```python
import torch

def _softmax(x, axis=-1):
    return torch.softmax(x, dim=axis)

def _gelu(x):
    return torch.nn.functional.gelu(x, approximate='tanh')

def _silu(x):
    return torch.nn.functional.silu(x)

def _sigmoid(x):
    return torch.sigmoid(x)

def _layernorm(x, axis=-1, eps=1e-05):
    m = x.mean(dim=axis, keepdim=True)
    v = x.var(dim=axis, keepdim=True, unbiased=False)
    return (x - m) / torch.sqrt(v + eps)

def _scatter_add(tgt, idx, src, axis=0):
    return tgt.clone().index_add_(axis, idx, src)

def _segment_sum(src, seg, n):
    out = torch.zeros((n,) + src.shape[1:], dtype=src.dtype)
    return out.index_add_(0, seg, src)

def _pad(x, pw):
    flat = tuple((v for pair in reversed(pw) for v in pair))
    return torch.nn.functional.pad(x, flat)
kernel_name = 'parallel_sum__memory_aug_recurrent_mem_tr__mixer_token_mlp__prompt'

def setup_inputs():

    _w = lambda a: (lambda t: t.to(torch.bfloat16) if t.is_floating_point() else t)(torch.as_tensor(a))

    def _A_setup():
        B, S, Dm = (1, 2048, 512)
        H, Dh = (32, 128)
        M, seg = (8, 32)
        seg = min(seg, S)
        S = S // seg * seg
        return {'x': _w((lambda *s: torch.randn(*s, dtype=torch.bfloat16) * 0.05)(B, S, Dm)), 'mem0': _w((lambda *s: torch.randn(*s, dtype=torch.bfloat16) * 0.2)(B, M, Dm)), 'Wq': _w((lambda *s: torch.randn(*s, dtype=torch.bfloat16) * 1.6)(Dm, H, Dh) * Dm ** (-0.5)), 'Wk': _w((lambda *s: torch.randn(*s, dtype=torch.bfloat16) * 1.6)(Dm, H, Dh) * Dm ** (-0.5)), 'Wv': _w((lambda *s: torch.randn(*s, dtype=torch.bfloat16) * 0.2)(Dm, H, Dh) * Dm ** (-0.5)), 'Wo': _w((lambda *s: torch.randn(*s, dtype=torch.bfloat16) * 0.2)(H, Dh, Dm) * (H * Dh) ** (-0.5)), 'seg_len': seg}
    _A_in = _A_setup()

    def _B_setup():
        B, S, D, F = (1, 2048, 512, 1792)
        return {'x': _w((lambda *s: torch.randn(*s, dtype=torch.bfloat16) * 0.05)(B, S, D)), 'w1': _w((lambda *s: torch.randn(*s, dtype=torch.bfloat16) * 0.4)(S, F) * S ** (-0.5)), 'b1': _w((lambda *s: torch.randn(*s, dtype=torch.bfloat16) * 3.2)(F) * 0.02), 'w2': _w((lambda *s: torch.randn(*s, dtype=torch.bfloat16) * 0.2)(F, S) * F ** (-0.5)), 'b2': _w((lambda *s: torch.randn(*s, dtype=torch.bfloat16) * 0.4)(S) * 0.02)}
    _B_in = _B_setup()
    return {'A_x': _A_in['x'], 'A_mem0': _A_in['mem0'], 'A_Wq': _A_in['Wq'], 'A_Wk': _A_in['Wk'], 'A_Wv': _A_in['Wv'], 'A_Wo': _A_in['Wo'], 'A_seg_len': _A_in['seg_len'], 'B_x': _B_in['x'], 'B_w1': _B_in['w1'], 'B_b1': _B_in['b1'], 'B_w2': _B_in['w2'], 'B_b2': _B_in['b2']}

def reference(A_x, A_mem0, A_Wq, A_Wk, A_Wv, A_Wo, A_seg_len, B_x, B_w1, B_b1, B_w2, B_b2):

    def _A_ref(x, mem0, Wq, Wk, Wv, Wo, seg_len):
        B, S, Dm = x.shape
        H, Dh = (Wq.shape[1], Wq.shape[2])
        M = mem0.shape[1]
        scale = Dh ** (-0.5)
        n_seg = S // seg_len
        L = M + seg_len
        idx = torch.arange(L)
        mask = (idx[:, None] < M) | (idx[:, None] >= idx[None, :])
        mem = mem0
        outs = []
        for s in range(n_seg):
            xs = x[:, s * seg_len:(s + 1) * seg_len, :].clone()
            h = torch.concatenate([mem, xs], axis=1)
            q = torch.einsum('btd,dhe->bhte', h, Wq)
            k = torch.einsum('btd,dhe->bhte', h, Wk)
            v = torch.einsum('btd,dhe->bhte', h, Wv)
            scores = torch.einsum('bhqe,bhke->bhqk', q, k) * scale
            scores = torch.where(mask[None, None], scores, -1000000000.0)
            p = _softmax(scores, axis=-1)
            o = torch.einsum('bhqk,bhke->bhqe', p, v)
            o = torch.einsum('bhte,hed->btd', o, Wo)
            mem = o[:, :M, :].clone()
            outs.append(o[:, M:, :])
        return torch.concatenate(outs, axis=1)

    def _B_ref(x, w1, b1, w2, b2):
        B, S, D = x.shape
        h = _layernorm(x, axis=-1)
        u = torch.einsum('bsd,sf->bdf', h, w1) + b1
        u = _gelu(u)
        y = torch.einsum('bdf,fs->bds', u, w2) + b2
        return (lambda x, *d: x.permute(*d))(y, 0, 2, 1)
    x = A_x
    xn = _layernorm(x, axis=-1)
    return x + _A_ref(xn, A_mem0, A_Wq, A_Wk, A_Wv, A_Wo, A_seg_len) + _B_ref(xn, B_w1, B_b1, B_w2, B_b2)
```

```python
import re

class Asm:
    def __init__(self):
        self.lines = []
        self._lab = 0
    def __call__(self, text):
        for ln in text.split("\n"):
            ln = ln.split(";")[0].strip() if not ln.strip().startswith(";") else ""
            if ln:
                self.lines.append(ln)
    def label(self, name):
        self.lines.append(name + ":")
    def newlabel(self, stem="L"):
        self._lab += 1
        return f"{stem}_{self._lab}"
    def comment(self, t):
        self.lines.append("; " + t)

def vr(b, n=1):
    return f"v{b}" if n == 1 else f"v[{b}:{b+n-1}]"
def ar(b, n=1):
    return f"a{b}" if n == 1 else f"a[{b}:{b+n-1}]"
def sr(b, n=1):
    return f"s{b}" if n == 1 else f"s[{b}:{b+n-1}]"

_reg_re = re.compile(r"(?<![\w.])([vas])(\d+|\[(\d+):(\d+)\])(?![\w])")
def regs_of(op):
    out = set()
    for m in _reg_re.finditer(op):
        k = m.group(1)
        if m.group(3) is not None:
            for i in range(int(m.group(3)), int(m.group(4)) + 1): out.add((k, i))
        else:
            out.add((k, int(m.group(2))))
    if re.search(r"\bvcc\b", op): out.add(("s", "vcc"))
    if re.search(r"\bexec(_hi|_lo)?\b", op): out.add(("s", "exec"))
    if re.search(r"\bm0\b", op): out.add(("s", "m0"))
    return out

TRANS = ("v_exp_f32", "v_log_f32", "v_rcp_f32", "v_rsq_f32", "v_sqrt_f32", "v_sin_f32", "v_cos_f32", "v_rcp_iflag_f32")

class Ins:
    __slots__ = ("text", "op", "kind", "rd", "wr", "passes", "srcc", "ab", "ws", "storedata", "dpp", "isbranch")
    def __init__(self, text):
        self.text = text
        parts = text.split(None, 1)
        op = parts[0]; self.op = op
        rest = parts[1] if len(parts) > 1 else ""
        ops = [o.strip() for o in re.split(r",(?![^\[]*\])", rest)] if rest else []
        self.rd = set(); self.wr = set(); self.passes = 0; self.srcc = set(); self.ab = set()
        self.ws = 1; self.storedata = set(); self.dpp = False; self.isbranch = False
        if op == "s_nop":
            self.kind = "nop"; self.ws = int(rest, 0) + 1
        elif op.startswith("v_mfma") or op.startswith("v_smfmac"):
            self.kind = "mfma"
            self.passes = 8 if "32x32" in op else 4
            self.wr = regs_of(ops[0])
            self.ab = regs_of(ops[1]) | regs_of(ops[2])
            last = regs_of(ops[3].split()[0])
            if op.startswith("v_smfmac"):
                self.srcc = set(self.wr); self.ab |= last
            else:
                self.srcc = last
            self.rd = self.ab | self.srcc
        elif op.startswith("v_"):
            self.kind = "valu"
            self.dpp = ("_dpp" in op) or ("quad_perm" in rest) or ("row_" in rest)
            if op.startswith("v_cmp"):
                self.wr = regs_of(ops[0]); rds = ops[1:]
                if op.startswith("v_cmpx"): self.wr.add(("s", "exec"))
            elif op.startswith("v_permlane16_swap") or op.startswith("v_permlane32_swap"):
                self.wr = regs_of(ops[0]) | regs_of(ops[1]); rds = ops
            elif op in ("v_add_co_u32", "v_sub_co_u32", "v_addc_co_u32", "v_subb_co_u32", "v_div_scale_f32", "v_mad_u64_u32"):
                self.wr = regs_of(ops[0]) | regs_of(ops[1]); rds = ops[2:]
            else:
                self.wr = regs_of(ops[0]); rds = ops[1:]
                if op.startswith(("v_fmac", "v_mac", "v_pk_fmac", "v_dot2c", "v_writelane")) or self.dpp:
                    rds = ops
            for o in rds: self.rd |= regs_of(o.split(" ")[0] if not o.startswith(("-", "abs", "|")) else o)
        elif op.startswith("ds_"):
            self.kind = "ds"
            if op.startswith(("ds_read", "ds_bpermute", "ds_permute", "ds_swizzle")):
                self.wr = regs_of(ops[0])
                for o in ops[1:]: self.rd |= regs_of(o.split(" ")[0])
            else:
                for o in ops: self.rd |= regs_of(o.split(" ")[0])
        elif op.startswith(("buffer_", "global_")):
            self.kind = "vmem"
            if op in ("buffer_wbl2", "buffer_inv"):
                pass
            elif op.startswith("buffer_load") and re.search(r"\blds\b", rest):
                for o in ops: self.rd |= regs_of(o.split(" ")[0])
                self.rd.add(("s", "m0"))
            elif "_load" in op:
                self.wr = regs_of(ops[0])
                for o in ops[1:]: self.rd |= regs_of(o.split(" ")[0])
            else:
                for o in ops: self.rd |= regs_of(o.split(" ")[0])
                if "atomic" in op and re.search(r"\bsc0\b", rest): self.wr = regs_of(ops[0])
                if op.endswith(("x3", "x4")):
                    self.storedata = regs_of(ops[0]) if op.startswith("buffer_") else regs_of(ops[1])
        elif op.startswith("s_"):
            self.kind = "salu"
            if op.startswith(("s_cbranch", "s_branch", "s_endpgm", "s_setpc")):
                self.isbranch = True
            elif op.startswith(("s_cmp", "s_waitcnt", "s_barrier", "s_sleep", "s_setprio", "s_bitcmp")):
                for o in ops: self.rd |= regs_of(o)
            else:
                if ops: self.wr = regs_of(ops[0])
                for o in ops[1:]: self.rd |= regs_of(o)
                if "saveexec" in op: self.wr.add(("s", "exec"))
        else:
            raise ValueError("unknown instruction: " + text)

def _vec(s): return {r for r in s if r[0] in "va"}
def _sca(s): return {r for r in s if r[0] == "s"}

def need(p, c):
    n = 0
    if p.kind == "valu":
        w = _vec(p.wr)
        if w:
            if c.kind == "mfma" and w & c.rd: n = max(n, 2)
            if c.kind == "valu":
                if c.op.startswith("v_permlane") and w & c.rd: n = max(n, 2)
                if c.dpp and w & c.rd: n = max(n, 2)
                if c.op.startswith(("v_readlane", "v_readfirstlane")) and w & c.rd: n = max(n, 1)
                if p.op.replace("_e32", "").replace("_e64", "") in TRANS and w & c.rd and c.op.replace("_e32", "").replace("_e64", "") not in TRANS: n = max(n, 1)
                if ("op_sel" in p.text and not p.op.startswith("v_pk")) or "sdwa" in p.op:
                    if w & (c.rd | c.wr): n = max(n, 1)
        s = _sca(p.wr)
        if s:
            if c.kind == "valu" and s & c.rd:
                n = max(n, 4 if c.op.startswith(("v_readlane", "v_writelane")) else 2)
            if c.kind == "vmem" and s & c.rd: n = max(n, 5)
            if ("s", "exec") in s:
                if c.kind == "mfma": n = max(n, 4)
                if c.kind == "valu" and (c.dpp or c.op.startswith(("v_permlane", "v_read", "v_write"))): n = max(n, 5)
    elif p.kind == "mfma":
        big = {4: 8, 8: 12}[p.passes]
        if c.kind in ("valu", "ds", "vmem") and p.wr & (c.rd | c.wr): n = max(n, big)
        if c.kind == "mfma":
            if p.wr & c.ab: n = max(n, big)
            ov = p.wr & c.srcc
            if ov and not (c.srcc == p.wr and c.op == p.op): n = max(n, {4: 8, 8: 12}[p.passes])
            if (p.wr & c.wr) and not ov: n = max(n, {4: 6, 8: 10}[p.passes])
        if c.kind == "valu" and p.srcc & c.wr: n = max(n, {4: 3, 8: 7}[p.passes])
    elif p.kind == "salu":
        if ("s", "m0") in p.wr and c.kind == "vmem" and ("s", "m0") in c.rd: n = max(n, 1)
    elif p.kind == "vmem":
        if p.storedata and p.storedata & c.wr: n = max(n, 2 if c.kind == "valu" else 1)
    return n

def _is_ins(ln): return not (ln.endswith(":") or ln.startswith((".", ";")))

def pad_hazards(lines, verbose=False):
    out = []; hist = []
    added = 0
    for ln in lines:
        if not _is_ins(ln):
            out.append(ln); continue
        c = Ins(ln)
        dist = 0; distm = 0; req = 0
        for p in reversed(hist[-24:]):
            r = need(p, c) - (distm if p.kind == "mfma" else dist)
            if r > req: req = r
            dist += p.ws
            distm += (p.passes - 1) if (p.kind == "mfma" and "16x16x16" not in p.op) else p.ws
            if dist >= 20: break
        while req > 0:
            k = min(req, 16)
            nop = Ins(f"s_nop {k-1}"); out.append(nop.text); hist.append(nop); req -= k; added += k
        out.append(ln); hist.append(c)
        if c.op in ("s_branch", "s_endpgm"): hist = []
    labels = {ln[:-1]: i for i, ln in enumerate(out) if ln.endswith(":")}
    for i, ln in enumerate(out):
        if _is_ins(ln) and ln.startswith(("s_cbranch", "s_branch")):
            tgt = ln.split()[1]
            if tgt not in labels: continue
            pre = []; j = i
            while j >= 0 and len(pre) < 24:
                if _is_ins(out[j]):
                    pre.append(Ins(out[j]))
                j -= 1
            post = []; j = labels[tgt]
            while j < len(out) and len(post) < 24:
                if _is_ins(out[j]):
                    x = Ins(out[j]); post.append(x)
                    if x.op in ("s_branch", "s_endpgm"): break
                j += 1
            d0 = 0
            for c in post:
                dist = d0
                for p in pre:
                    if need(p, c) > dist:
                        raise RuntimeError(f"hazard across branch '{ln}': '{p.text}' -> '{c.text}' need {need(p,c)} have {dist}")
                    dist += p.ws
                    if dist >= 20: break
                d0 += c.ws
                if d0 >= 20: break
    if verbose: print("hazard nops added (wait states):", added)
    return out
```

```python
from common import *
import math, struct

L_WO = 0; L_MEM = 131072; L_STG = L_MEM + 8192; L_QIM = L_STG + 16384; L_KIM = L_QIM + 2048
L_SEL = L_KIM + 2048; L_PRG = L_SEL + 1024
MF, KX, QF, KF, VX = 0, 32, 64, 80, 96
vM, vMR, vWO, vIDX, vH1, vH2, vQW, vQR = 104, 105, 106, 107, 108, 109, 110, 111
vMW = 11
TA = 112; PUB = 120; P0A = 124; P0B = 126
WV = 128
WK, WQ = 0, 128
sSTEP, sPAR, sRD0, sRD1, sSLOT, sSLOTL, sKX, sVX, sPUB, sPROG, sM0K, sM0V, sT0, sT1, sRING_R = 31, 32, 33, 36, 37, 38, 39, 40, 41, 42, 43, 44, 45, 46, 47
sSC = 34
sHI = 48
sQM = 94; sMK = 16
sRDB = 47; sONE = 98
sFLG = 50
sPRF = 52
W = f"s[{S_WS}:{S_WS+3}]"

def f2u(x): return struct.unpack("<I", struct.pack("<f", x))[0]

def kv_wait(A, need_sgpr_expr_reg, tag):
    lab = A.newlabel("L_kvw"); done = A.newlabel("L_kvd")
    A(f"s_cmp_ge_u32 s{sPROG}, s{need_sgpr_expr_reg}\ns_cbranch_scc1 {done}")
    A.label(lab)
    A(f"""v_mov_b32 v76, 0
buffer_load_dwordx4 v[72:75], v76, {W}, s{sFLG} offen sc1
s_waitcnt vmcnt(0)""")
    prog_from(A, 72)
    A(f"s_cmp_ge_u32 s{sPROG}, s{need_sgpr_expr_reg}\ns_cbranch_scc1 {done}\ns_sleep 1")
    spin_guard(A)
    A(f"s_branch {lab}")
    A.label(done)

def prog_from(A, b):
    _prog_from(A, b)
    A(f"s_max_u32 s{sPROG}, s{sPROG}, s30")

def _prog_from(A, b):
    A(f"""v_min_u32 v{b}, v{b}, v{b+2}
v_min_u32 v{b+1}, v{b+1}, v{b+3}
v_lshlrev_b32 v{b}, 1, v{b}
v_lshl_or_b32 v{b+1}, v{b+1}, 1, 1
v_min_u32 v{b}, v{b}, v{b+1}
v_readfirstlane_b32 s30, v{b}""")

def dma_kv(A):
    A(f"""s_mov_b32 m0, s{sM0K}
s_nop 0
buffer_load_dwordx4 v{vM}, {W}, s{sKX} offen sc1 lds
buffer_load_dwordx4 v{vM}, {W}, s{sKX} offen offset:1024 sc1 lds
s_mov_b32 m0, s{sM0V}
s_nop 0
buffer_load_dwordx4 v{vM}, {W}, s{sVX} offen sc1 lds
buffer_load_dwordx4 v{vM}, {W}, s{sVX} offen offset:1024 sc1 lds
s_add_u32 s{sKX}, s{sKX}, 0x40000
s_add_u32 s{sVX}, s{sVX}, 0x40000""")

def stage_reads(A, w=None):
    for i in range(8):
        A(f"ds_read_b128 {vr(KX+4*i,4)}, v{vM} offset:{L_STG-L_MEM+i*1024}")
    for i in range(2):
        if w is None: A(f"ds_read_b128 {vr(VX+4*i,4)}, v{vMW} offset:{L_STG-L_MEM+8192+i*1024}")
        else: A(f"ds_read_b128 {vr(VX+4*i,4)}, v{vM} offset:{L_STG-L_MEM+8192+w*2048+i*1024}")

def zero_accs(A):
    for b in (80, 64, TA):
        for i in range(0, 8, 2): A(f"v_mov_b64 {vr(b+i,2)}, 0")

def istamp(A, i, prof):
    if not prof: return
    A(f"""s_memtime s[52:53]
s_memrealtime s[54:55]
s_lshl_b32 s56, s{S_ROLE}, 2
s_add_u32 s56, s56, s{S_W}
s_lshl_b32 s56, s56, 7
s_add_u32 s56, s56, {WS_PROF + 0x100000 + i*8:#x}
s_waitcnt lgkmcnt(0)
v_mov_b32 v14, s52
v_mov_b32 v15, s54
v_mov_b32 v9, 0
s_mov_b64 exec, 1
buffer_store_dwordx2 v[14:15], v9, {W}, s56 offen
s_mov_b64 exec, -1""")

def init(A, test=False, prof=False):
    h, w = S_ROLE, S_W
    istamp(A, 0, prof)
    A(f"""v_lshlrev_b32 v1, 4, v0
v_add_u32 v{vM}, {L_MEM}, v1
s_lshl_b32 s{sT0}, s{w}, 11
v_add_u32 v{vMW}, s{sT0}, v{vM}
s_lshl_b32 s{sT0}, s{w}, 15
v_add_u32 v{vWO}, s{sT0}, v1
v_and_b32 v2, 15, v0          ; n
v_lshrrev_b32 v3, 4, v0       ; g
v_mov_b32 v4, 0x88884444
v_mov_b32 v5, 0xddddeeee
v_cmp_gt_u32 vcc, 8, v2
v_cndmask_b32 v{vIDX}, v5, v4, vcc
v_lshrrev_b32 v4, 2, v2
v_lshlrev_b32 v4, 1, v4
s_lshl_b32 s{sT0}, s{w}, 3
v_add_u32 v4, s{sT0}, v4
v_add_u32 v5, s{h}, v4
v_and_b32 v5, 31, v5
v_lshlrev_b32 v5, 6, v5
v_lshl_add_u32 v5, v4, 13, v5
v_and_b32 v4, 3, v2
v_lshl_add_u32 v5, v4, 4, v5
v_lshl_add_u32 v{vH1}, v3, 11, v5
; vH2 = h*256 + w*64 + g*16 + (n&3)*4
v_lshlrev_b32 v5, 2, v4
v_lshl_add_u32 v5, v3, 4, v5
s_lshl_b32 s{sT0}, s{h}, 8
s_lshl_b32 s{sT1}, s{w}, 6
s_add_u32 s{sT0}, s{sT0}, s{sT1}
v_add_u32 v{vH2}, s{sT0}, v5
v_lshrrev_b32 v4, 1, v3
v_lshlrev_b32 v5, 8, v4
v_lshl_add_u32 v5, v2, 4, v5
v_and_b32 v4, 1, v3
v_lshl_add_u32 v5, v4, 3, v5
s_lshl_b32 s{sT0}, s{w}, 9
s_add_u32 s{sT0}, s{sT0}, {L_QIM}
v_add_u32 v{vQW}, s{sT0}, v5
v_lshrrev_b32 v4, 2, v2
v_lshl_add_u32 v4, v3, 2, v4
v_lshlrev_b32 v4, 4, v4
v_and_b32 v5, 1, v2
v_lshl_add_u32 v4, v5, 3, v4
v_add_u32 v{vQR}, {L_QIM}, v4
v_mov_b32 v{P0A+1}, 0
v_mov_b32 v{P0B}, 0
; scalars
s_mov_b32 s{sSC}, {f2u(math.log2(math.e)/math.sqrt(128.0)):#x}
s_mov_b32 s{sSC+1}, s{sSC}
s_mov_b32 s{sHI}, 0
s_mov_b32 s{sHI+1}, -1
s_mov_b32 s{sSTEP}, 0
s_mov_b32 s{sPAR}, {WS_INB:#x}
s_lshl_b32 s{sT0}, s{h}, 13
s_add_u32 s{sRDB}, s{sT0}, {WS_INB - L_MEM:#x}
s_mov_b32 s{sONE}, 0x3f803f80
s_mov_b32 s{sONE+1}, 0x3f803f80
s_lshl_b32 s{sT1}, s{w}, 11
s_add_u32 s{sT0}, s{sT0}, s{sT1}
s_add_u32 s{sKX}, s{sT0}, {WS_KX - L_MEM:#x}
s_add_u32 s{sVX}, s{sT0}, {WS_VX - L_MEM:#x}
s_lshl_b32 s{sT0}, s{h}, 12
s_lshl_b32 s{sT1}, s{w}, 10
s_add_u32 s{sT0}, s{sT0}, s{sT1}
s_add_u32 s{sPUB}, s{sT0}, {WS_KVM - L_MEM:#x}
s_lshl_b32 s{sT0}, s{w}, 11
s_add_u32 s{sM0K}, s{sT0}, {L_STG}
s_add_u32 s{sM0V}, s{sT0}, {L_STG + 8192}
s_lshl_b32 s{sT0}, s{h}, 7
s_add_u32 s{sFLG}, s{sT0}, {WS_FLAG:#x}
s_mov_b32 s{sPROG}, {64 if test else 0}
v_mov_b32 v4, -1
v_mov_b32 v5, -1
v_mov_b32 v6, -1
v_mov_b32 v7, -1
s_add_u32 s{sT0}, s{sRDB}, 0x40000
s_add_u32 s{sT1}, s{sRDB}, 0x80000
s_add_u32 s30, s{sRDB}, 0xc0000
buffer_store_dwordx4 v[4:7], v{vMW}, {W}, s{sRDB} offen sc1
buffer_store_dwordx4 v[4:7], v{vMW}, {W}, s{sRDB} offen offset:1024 sc1
buffer_store_dwordx4 v[4:7], v{vMW}, {W}, s{sT0} offen sc1
buffer_store_dwordx4 v[4:7], v{vMW}, {W}, s{sT0} offen offset:1024 sc1
buffer_store_dwordx4 v[4:7], v{vMW}, {W}, s{sT1} offen sc1
buffer_store_dwordx4 v[4:7], v{vMW}, {W}, s{sT1} offen offset:1024 sc1
buffer_store_dwordx4 v[4:7], v{vMW}, {W}, s30 offen sc1
buffer_store_dwordx4 v[4:7], v{vMW}, {W}, s30 offen offset:1024 sc1
s_mov_b32 s{sQM}, 0x000f000f
s_mov_b32 s{sQM+1}, 0x000f000f
s_mov_b64 exec, s[{sQM}:{sQM+1}]
s_mov_b32 s{sT0}, {WS_RING:#x}
s_mov_b32 s{sT1}, {WS_RING+16384:#x}
buffer_store_dword v4, v{vH2}, {W}, s{sT0} offen sc1
buffer_store_dword v4, v{vH2}, {W}, s{sT1} offen sc1
s_mov_b32 s{sT0}, {WS_RING+8192:#x}
s_mov_b32 s{sT1}, {WS_RING+24576:#x}
buffer_store_dword v4, v{vH2}, {W}, s{sT0} offen sc1
buffer_store_dword v4, v{vH2}, {W}, s{sT1} offen sc1
s_mov_b64 exec, -1
v_mov_b32 v8, 0
v_lshlrev_b32 v9, 2, v0
s_lshl_b32 s{sT0}, s{w}, 5
s_add_u32 s{sT0}, s{sT0}, s{sFLG}
s_lshl_b32 s{sT1}, s{w}, 7
s_lshl_b32 s30, s{h}, 2
s_add_u32 s{sT1}, s{sT1}, s30
s_add_u32 s{sT1}, s{sT1}, {WS_PO:#x}
s_mov_b64 exec, 0xff
buffer_store_dword v8, v9, {W}, s{sT0} offen sc1
s_mov_b64 exec, 1
buffer_store_dword v8, v9, {W}, s{sT1} offen sc1
s_mov_b64 exec, -1
""")
    A(f"""v_lshrrev_b32 v4, 1, v3
v_lshlrev_b32 v4, 2, v4
v_and_b32 v5, 1, v3
v_lshl_add_u32 v4, v5, 4, v4
v_lshlrev_b32 v4, 13, v4
v_lshl_add_u32 v4, v2, 2, v4
s_lshl_b32 s{sT0}, s{h}, 8
s_lshl_b32 s{sT1}, s{w}, 6
s_add_u32 s{sT0}, s{sT0}, s{sT1}
v_add_u32 v1, s{sT0}, v4
v_lshrrev_b32 v4, 1, v3
v_lshlrev_b32 v4, 3, v4
v_add_u32 v4, v4, v5
v_lshlrev_b32 v4, 10, v4
v_lshl_add_u32 v4, v2, 4, v4
s_lshl_b32 s{sT0}, s{h}, 17
s_lshl_b32 s{sT1}, s{w}, 8
s_add_u32 s{sT0}, s{sT0}, s{sT1}
v_add_u32 v10, s{sT0}, v4
s_mov_b32 s60, 0x05040100
s_mov_b32 s61, 0x07060302""")
    srd(A, 12, P_WK, 0x400000); srd(A, 16, P_WQ, 0x400000); srd(A, 20, P_WV, 0x400000); srd(A, 24, P_WO, 0x400000)
    jobs = []
    for (sb, kind, base) in ((12, "a", WK), (16, "a", WQ), (20, "v", WV)):
        for t in range(8):
            for jp in range(8):
                row = 64*t + 32*(jp >> 2) + 8*((jp >> 1) & 1) + (jp & 1)
                jobs.append((sb, row, kind, base + (t*2)*8 + jp, base + (t*2+1)*8 + jp))
    DEPTH = 28
    LB = 16
    def issue(i):
        sb, row, _, _, _ = jobs[i]; r = LB + 2*(i % DEPTH)
        A(f"s_mov_b32 s{sT0}, {row*8192:#x}\ns_mov_b32 s{sT1}, {(row+2)*8192:#x}")
        A(f"buffer_load_dword v{r}, v1, s[{sb}:{sb+3}], s{sT0} offen\nbuffer_load_dword v{r+1}, v1, s[{sb}:{sb+3}], s{sT1} offen")
    def retire(i):
        _, _, kind, d0, d1 = jobs[i]; r = LB + 2*(i % DEPTH)
        if kind == "v":
            A(f"v_perm_b32 v{d0}, v{r+1}, v{r}, s60\nv_perm_b32 v{d1}, v{r+1}, v{r}, s61")
        else:
            A(f"v_perm_b32 v12, v{r+1}, v{r}, s60\nv_perm_b32 v13, v{r+1}, v{r}, s61\nv_accvgpr_write_b32 a{d0}, v12\nv_accvgpr_write_b32 a{d1}, v13")
    for i in range(DEPTH): issue(i)
    A(f"s_waitcnt vmcnt({2*DEPTH})\ns_barrier")
    lab = A.newlabel("L_ci")
    A(f"s_cmp_lg_u32 s{w}, 0\ns_cbranch_scc1 {lab}")
    A(f"s_lshl_b32 s{sT0}, 1, s{S_XCC}")
    A(f"""v_mov_b32 v14, s{sT0}
v_mov_b32 v15, {DBG_XM}
s_mov_b64 exec, 1
buffer_atomic_or v14, v15, s[{S_DBG}:{S_DBG+3}], 0 offen sc0
s_waitcnt vmcnt(0)
v_mov_b32 v14, 1
v_mov_b32 v15, {DBG_CI}
buffer_atomic_add v14, v15, s[{S_DBG}:{S_DBG+3}], 0 offen
s_mov_b64 exec, -1""")
    A.label(lab)
    n = len(jobs)
    for i in range(n):
        rem = min(DEPTH - 1, n - 1 - i)
        A(f"s_waitcnt vmcnt({2*rem})")
        retire(i)
        if i + DEPTH < n: issue(i + DEPTH)
    istamp(A, 1, prof)
    for rnd in range(2):
        for fi in range(2):
            fp = rnd*2 + fi
            A(f"s_xor_b32 s{sT1}, s{w}, {fp}\ns_lshl_b32 s{sT1}, s{sT1}, 15")
            for jp in range(8):
                e = 16*(jp >> 2) + 2*(jp & 3)
                A(f"s_add_u32 s{sT0}, s{sT1}, {e*1024}")
                A(f"buffer_load_dwordx4 {vr(16 + fi*32 + jp*4, 4)}, v10, s[24:27], s{sT0} offen")
        for fi in range(2):
            fp = rnd*2 + fi
            A(f"s_waitcnt vmcnt({8 if fi == 0 else 0})")
            for P in range(4):
                for half in range(2):
                    for q in range(4):
                        A(f"v_mov_b32 v{80 + ((P*2+half) % 4)*4 + q}, v{16 + fi*32 + (half*4+q)*4 + P}")
                    A(f"ds_write_b128 v{vWO}, {vr(80 + ((P*2+half) % 4)*4, 4)} offset:{(P*4+fp)*2048 + half*1024}")
                    if (P*2+half) % 4 == 3: A("s_waitcnt lgkmcnt(0)")
    istamp(A, 2, prof)
    A(f"""v_lshrrev_b32 v4, 2, v2      ; g'
v_and_b32 v5, 3, v2           ; r
v_and_b32 v6, 1, v4
v_lshlrev_b32 v6, 4, v6
v_mov_b32 v7, 0x3f80
v_lshlrev_b32 v7, v6, v7      ; value
v_lshrrev_b32 v4, 1, v4
v_lshl_add_u32 v4, v5, 1, v4""")
    for q in range(4):
        A(f"v_cmp_eq_u32 vcc, {q}, v4\nv_cndmask_b32 v{12+q}, 0, v7, vcc")
    A(f"ds_write_b128 v{vM}, v[12:15] offset:{L_SEL - L_MEM}")
    A(f"s_mov_b32 s{sT0}, 1")
    A(f"v_mov_b32 v12, 0\nv_lshlrev_b32 v13, 2, v0\nv_add_u32 v13, {L_PRG}, v13\nds_write_b32 v13, v12")
    kv_wait(A, sT0, "i")
    dma_kv(A)
    srd(A, 12, P_MEM0, 8192)
    A(f"""v_and_b32 v4, 7, v0
v_lshlrev_b32 v4, 10, v4          ; m*1024
v_lshrrev_b32 v5, 1, v3
v_lshl_add_u32 v4, v5, 6, v4
v_and_b32 v5, 1, v3
v_lshl_add_u32 v4, v5, 3, v4      ; 4*(gA&1)
s_lshl_b32 s{sT0}, s{w}, 8
v_mov_b32 v6, s60
v_mov_b32 v7, s61
v_cmp_gt_u32 vcc, 8, v2
v_cndmask_b32 v6, v7, v6, vcc""")
    for k in range(8):
        A(f"buffer_load_dwordx2 {vr(16+2*k,2)}, v4, s[12:15], s{sT0} offen offset:{(k>>2)*128 + (k&3)*16}")
    poll_dbg_ge(A, DBG_CI, 32, vt=72)
    A(f"""v_mov_b32 v73, {DBG_XM}
buffer_load_dword v72, v73, s[{S_DBG}:{S_DBG+3}], 0 offen sc1
s_waitcnt vmcnt(0) lgkmcnt(0)
v_readfirstlane_b32 s{sT0}, v72
s_bcnt1_i32_b32 s51, s{sT0}
s_barrier""")
    stage_reads(A)
    zero_accs(A)
    for k in range(8):
        A(f"v_perm_b32 v{72+k}, v{17+2*k}, v{16+2*k}, v6")
    A(f"s_lshl_b32 s{sT0}, s{w}, 11\ns_add_u32 s{sRDB}, s{sRDB}, s{sT0}")
    istamp(A, 3, prof)
    A(f"s_waitcnt lgkmcnt(0)\ns_cmp_eq_u32 s51, 1\ns_cbranch_scc0 L_go_safe")
    for mode in ("fast", "safe"):
        A.label(f"L_go_{mode}")
        for k in range(3): A(f"s_cmp_eq_u32 s{w}, {k}\ns_cbranch_scc1 L_enter_{mode}{k}")
        A(f"s_branch L_enter_{mode}3")

def interleave(A, main, fill, per=1, start=0, every=1):
    fill = list(fill)
    for i, m in enumerate(main):
        A(m)
        if i >= start and (i - start) % every == 0:
            for _ in range(per):
                if fill: A(fill.pop(0))
    return fill

def loop(A, mode, sc, w, prof=False, D1=0, D2=0, PTS=None, RT=False, PUBAT='max', E1=64, E2=128):
    tag = f"{mode}{w}"
    pts = PTS if PTS else ["enter", "kend", "send", "oex", "h1", "p1", "h2"]
    def mark(name):
        A.lines.append(f"; MARK {name}")
        if prof and name in pts:
            i = pts.index(name)
            r = (sPRF + 2*i) if i < 4 else (96 if i == 6 else 62 if i == 5 else 12)
            A(f"s_mem{'real' if RT else ''}time s[{r}:{r+1}]")
    def delay(n):
        while n > 0:
            k = min(16, (n+3)//4); A(f"s_nop {k-1}"); n -= 4*k
    A(".p2align 6")
    A.label(f"L_loop_{tag}")
    delay(D2)
    ld2 = f"""buffer_load_dwordx4 v[72:75], v{vM}, {W}, s{sSLOTL} offen sc1
buffer_load_dwordx4 v[76:79], v{vM}, {W}, s{sSLOTL} offen offset:1024 sc1"""
    chk2 = f"""v_max3_u32 v88, v72, v73, v74
v_max3_u32 v89, v76, v77, v78
v_max_u32 v88, v88, v75
v_max_u32 v89, v89, v79
v_cmp_eq_u32 vcc, -1, v88
v_cmp_eq_u32 s[{sMK}:{sMK+1}], -1, v89
s_or_b64 s[{sMK+2}:{sMK+3}], vcc, s[{sMK}:{sMK+1}]"""
    A(ld2)
    delay(E2)
    A(ld2)
    A(f"""buffer_store_dwordx4 v[8:11], v{vM}, {W}, s{sRD0} offen {sc}
buffer_store_dwordx4 v[8:11], v{vM}, {W}, s{sRD0} offen offset:1024 {sc}
s_waitcnt vmcnt(4)""")
    A(chk2)
    A(f"s_cbranch_scc1 L_p2b_{tag}")
    A.label(f"L_enter_{tag}")
    mark("enter")
    A(f"""ds_write_b128 v{vM}, v[72:75] offset:{w*2048}
ds_write_b128 v{vM}, v[76:79] offset:{w*2048+1024}
s_add_u32 s{sT0}, s{sSTEP}, 2
s_min_u32 s{sT0}, s{sT0}, 64
s_cmp_lt_u32 s{sPROG}, s{sT0}
s_cbranch_scc1 L_kvw_{tag}""")
    A.label(f"L_kvd_{tag}")
    A(f"s_mov_b32 m0, s{sM0K}")
    A("s_waitcnt lgkmcnt(0)")
    mark("b0a")
    A("s_barrier")
    mark("b0b")
    for t in range(8):
        A(f"ds_read_b128 {vr(MF+4*t,4)}, v{vM} offset:{t*1024}")
    def proj(acc, kind, base, first=False):
        out = []
        for t in range(8):
            for T in range(2):
                b = base + (t*2+T)*8
                B = ar(b, 8) if kind == "a" else vr(b, 8)
                s = f"v_smfmac_f32_16x16x64_bf16 {vr(acc+4*T,4)}, {vr(MF+4*t,4)}, {B}, v{vIDX}"
                if first and T == 0: s = f"s_waitcnt lgkmcnt({7-t})\n" + s
                out.append(s)
        return out
    def swaps(b): return [f"v_permlane32_swap_b32 v{b+i}, v{b+4+i}" for i in range(4)]
    def padds(b): return [f"v_pk_add_f32 {vr(b+i,2)}, {vr(b+i,2)}, {vr(b+4+i,2)}" for i in (0, 2)]
    side = [f"buffer_load_dwordx4 v{vM}, {W}, s{sKX} offen sc1 lds",
            f"buffer_load_dwordx4 v{vM}, {W}, s{sKX} offen offset:1024 sc1 lds\ns_mov_b32 m0, s{sM0V}",
            f"buffer_load_dwordx4 v{vM}, {W}, s{sVX} offen sc1 lds",
            f"buffer_load_dwordx4 v{vM}, {W}, s{sVX} offen offset:1024 sc1 lds"]
    rest = interleave(A, proj(64, "a", WQ, first=True), side, per=1, start=1, every=4)
    assert not rest
    A("s_waitcnt vmcnt(4)")
    mark("qend")
    def adds(b): return [f"v_add_f32 v{b+i}, v{b+i}, v{b+4+i}" for i in range(4)]
    qepi = swaps(64) + adds(64) + ["v_cvt_pk_bf16_f32 v68, v64, v65", "v_cvt_pk_bf16_f32 v69, v66, v67\n" + f"ds_write_b64 v{vQW}, v[68:69]"]
    kp = proj(80, "a", WK)
    A(kp[0]); A(f"s_cmp_lt_u32 s{sSTEP}, 62\ns_cselect_b32 s{sT1}, 0x40000, 0")
    A(kp[1]); A(f"s_add_u32 s{sKX}, s{sKX}, s{sT1}\ns_add_u32 s{sVX}, s{sVX}, s{sT1}")
    rest = interleave(A, kp[2:12], qepi, per=1)
    assert not rest
    misc = []
    if w == 3:
        misc = [f"v_mov_b32 v72, s{sSTEP}", "v_mov_b32 v73, 32",
                f"s_mov_b64 exec, 1\nbuffer_store_dword v72, v73, {W}, s{sFLG} offen sc1\ns_mov_b64 exec, -1"]
    if w == 1:
        misc = [f"v_mov_b32 v73, 0\ns_mov_b32 m0, {L_PRG}",
                f"s_mov_b64 exec, 1\nbuffer_load_dwordx4 v73, {W}, s{sFLG} offen sc1 lds\ns_mov_b64 exec, -1"]
    rest = interleave(A, kp[12:16], misc, per=1)
    assert not rest
    A("s_waitcnt lgkmcnt(0)")
    mark("b1a")
    A("s_barrier")
    mark("b1b")
    qtr = []; ktr = []
    for j in range(4):
        qtr += [f"ds_read_b64_tr_b16 {vr(QF+4*j,2)}, v{vQR} offset:{j*512}", f"ds_read_b64_tr_b16 {vr(QF+4*j+2,2)}, v{vQR} offset:{j*512+256}"]
        ktr += [f"ds_read_b64_tr_b16 {vr(KF+4*j,2)}, v{vQR} offset:{2048+j*512}", f"ds_read_b64_tr_b16 {vr(KF+4*j+2,2)}, v{vQR} offset:{2048+j*512+256}"]
    mark("kend")
    seq = [(P, 0) for P in range(4)] + [(P, f) for P in range(4) for f in (1, 2, 3)]
    buf = [32, 40, 48, 56, 64, 72, 80, 88, 24, 96, 32, 40, 48, 56, 64, 72]
    def wo_rd(q):
        P, f = seq[q]
        return [f"ds_read_b128 {vr(buf[q]+4*hf,4)}, v{vWO} offset:{(P*4+f)*2048+hf*1024}" for hf in range(2)]
    S1, S2, S0 = 0, 4, 8
    def smm(j, which):
        c = lambda b: "0" if j == 0 else vr(b, 4)
        D, Aop = {1: (S1, KX+4*j), 2: (S2, KX+16+4*j), 0: (S0, KF+4*j)}[which]
        return f"v_mfma_f32_16x16x32_bf16 {vr(D,4)}, {vr(Aop,4)}, {vr(QF+4*j,4)}, {c(D)}"
    vp = proj(TA, "v", WV)
    kepi = swaps(80) + adds(80) + [f"v_cvt_pk_bf16_f32 v{PUB}, v80, v81", f"v_cvt_pk_bf16_f32 v{PUB+1}, v82, v83\nds_write_b64 v{vQW}, {vr(PUB,2)} offset:{L_KIM-L_QIM}"]
    A(qtr[0]); A(qtr[1]); A(vp[0]); A(qtr[2]); A(qtr[3]); A(vp[1]); A(qtr[4]); A(qtr[5])
    A(vp[2]); A(kepi[0]); A(qtr[6]); A(qtr[7])
    rest = interleave(A, vp[3:6], kepi[1:4], per=1)
    A(f"s_add_u32 s{sT1}, s{sSTEP}, 2\ns_and_b32 s{sT1}, s{sT1}, 3\ns_lshl_b32 s{sT1}, s{sT1}, 13\ns_add_u32 s{sT1}, s{sT1}, {WS_RING:#x}")
    A("s_waitcnt lgkmcnt(0)")
    A(smm(0, 1)); A(kepi[4]); A(kepi[5]); A(smm(1, 1)); A(kepi[6]); A(kepi[7]); A(smm(2, 1)); A(kepi[8]); A(kepi[9]); A(smm(3, 1))
    rst = ["v_mov_b32 v84, -1", f"s_mov_b64 exec, s[{sQM}:{sQM+1}]\nbuffer_store_dword v84, v{vH2}, {W}, s{sT1} offen {sc}\ns_mov_b64 exec, -1"]
    rest = interleave(A, vp[6:10], wo_rd(0) + rst, per=1)
    assert not rest
    A("s_waitcnt lgkmcnt(2)")
    mark("b2a")
    A("s_barrier")
    mark("b2b")
    A(ktr[0]); A(ktr[1])
    rest = interleave(A, vp[10:13], ktr[2:], per=2)
    assert not rest
    rest = interleave(A, vp[13:16], wo_rd(1), per=1)
    assert not rest
    mark("vend")
    vepi = swaps(TA) + adds(TA) + [f"v_cvt_pk_bf16_f32 v{PUB+2}, v{TA}, v{TA+1}", f"v_cvt_pk_bf16_f32 v{PUB+3}, v{TA+2}, v{TA+3}"]
    A(smm(0, 2)); A(f"v_mov_b64 v[16:17], s[{sONE}:{sONE+1}]")
    A(smm(1, 2)); A(f"v_mov_b64 v[18:19], s[{sONE}:{sONE+1}]"); A(wo_rd(8)[0]); A(wo_rd(8)[1])
    A(smm(2, 2)); A(vepi[0]); A(smm(3, 2)); A(vepi[1])
    A("s_waitcnt lgkmcnt(4)")
    pre = []
    for q in (2, 3, 4, 5, 6, 7): pre += wo_rd(q)
    P = lambda: pre.pop(0)
    A(smm(0, 0)); A(vepi[2]); A(P()); A(smm(1, 0)); A(vepi[3]); A(P()); A(smm(2, 0)); A(vepi[4]); A(vepi[5]); A(smm(3, 0)); A(vepi[6]); A(vepi[7])
    A(vepi[8]); A(vepi[9])
    mark("send")
    for x in ["v_max3_f32 v12, v0, v1, v2", "v_max3_f32 v13, v3, v4, v5", "v_max3_f32 v12, v12, v6, v7",
              f"v_permlane32_swap_b32 v{PUB+2}, v{PUB+3}",
              f"v_cndmask_b32 v8, v8, v10, s[{sHI}:{sHI+1}]", f"v_cndmask_b32 v9, v9, v11, s[{sHI}:{sHI+1}]",
              "v_max3_f32 v13, v13, v8, v9", "v_max_f32 v12, v12, v13",
              "v_mov_b32 v13, v12", P(), P(), "v_permlane32_swap_b32 v12, v13", "v_max_f32 v12, v12, v13",
              "v_mov_b32 v13, v12", P(), P(), "v_permlane16_swap_b32 v12, v13", "v_max_f32 v12, v12, v13",
              f"v_mul_f32 v12, s{sSC}, v12"]: A(x)
    mark("max")
    if PUBAT == "max": A(f"buffer_store_dwordx4 {vr(PUB,4)}, v{vM}, {W}, s{sPUB} offen sc1")
    for i in range(0, 10, 2):
        A(f"v_pk_fma_f32 {vr(i,2)}, {vr(i,2)}, s[{sSC}:{sSC+1}], v[12:13] op_sel_hi:[1,1,0] neg_lo:[0,0,1] neg_hi:[0,0,1]")
    for i in range(8): A(f"v_exp_f32 v{i}, v{i}")
    A("v_cvt_pk_bf16_f32 v12, v0, v1\nv_cvt_pk_bf16_f32 v13, v2, v3\nv_cvt_pk_bf16_f32 v14, v4, v5\nv_cvt_pk_bf16_f32 v15, v6, v7")
    A("v_exp_f32 v8, v8\nv_exp_f32 v9, v9")
    O0, O1 = TA, TA+4
    mark("exp")
    A(f"v_mfma_f32_16x16x32_bf16 v[20:23], v[16:19], v[12:15], 0")
    A(f"v_cvt_pk_bf16_f32 v{P0A}, v8, v9\nv_cvt_pk_bf16_f32 v{P0B+1}, v8, v9")
    A(f"v_mfma_f32_16x16x32_bf16 {vr(O0,4)}, {vr(VX,4)}, v[12:15], 0")
    A(P()); A("v_mov_b64 v[0:1], 0\nv_mov_b64 v[2:3], 0")
    A(f"v_mfma_f32_16x16x16_bf16 v[20:23], v[16:17], {vr(P0A,2)}, v[20:23]")
    A(P()); A("v_mov_b64 v[4:5], 0\nv_mov_b64 v[6:7], 0")
    A(f"v_mfma_f32_16x16x32_bf16 {vr(O1,4)}, {vr(VX+4,4)}, v[12:15], 0")
    A(P()); A("v_mov_b64 v[8:9], 0\nv_mov_b64 v[10:11], 0")
    A(f"v_mfma_f32_16x16x16_bf16 {vr(O0,4)}, {vr(PUB+2,2)}, {vr(P0A,2)}, {vr(O0,4)}")
    A(P()); A("v_mov_b64 v[12:13], 0\nv_mov_b64 v[14:15], 0")
    A(f"v_mfma_f32_16x16x16_bf16 {vr(O1,4)}, {vr(PUB+2,2)}, {vr(P0B,2)}, {vr(O1,4)}")
    mark("pv")
    A("v_rcp_f32 v20, v20")
    A(P()); A(P())
    assert not pre
    r9 = wo_rd(9)
    A(r9[0]); A(r9[1])
    for i in range(0, 8, 2):
        A(f"v_pk_mul_f32 {vr(O0+i,2)}, {vr(O0+i,2)}, v[20:21] op_sel_hi:[1,0]")
    for i in range(4):
        A(f"v_cvt_pk_bf16_f32 v{16+i}, v{O0+2*i}, v{O0+2*i+1}")
    A(f"ds_write_b128 v{vM}, v[16:19] offset:{w*2048}")
    mark("oex")
    OF = [16, O0, O1, 20]
    def cmm(q):
        P_, f = seq[q]
        return f"v_smfmac_f32_16x16x64_bf16 {vr(4*P_,4)}, {vr(OF[f],4)}, {vr(buf[q],8)}, v{vIDX} abid:1"
    A("s_waitcnt lgkmcnt(11)")
    A(cmm(0)); A(wo_rd(10)[0]); A(wo_rd(10)[1]); A(cmm(1)); A(wo_rd(11)[0]); A(wo_rd(11)[1]); A(cmm(2)); A(cmm(3))
    pub = f"buffer_store_dwordx4 {vr(PUB,4)}, v{vM}, {W}, s{sPUB} offen sc1"
    if PUBAT == "own": A(pub)
    if PUBAT == "plain": A(pub[:-4])
    A(f"s_cmp_eq_u32 s{sSTEP}, 63\ns_cbranch_scc1 L_chain_end")
    mark("own")
    A(f"s_waitcnt vmcnt({0 if PUBAT in ('none', 'p2') else 1}) lgkmcnt(4)")
    mark("b3a")
    A("s_barrier")
    mark("b3b")
    for f in (1, 2, 3):
        A(f"ds_read_b128 {vr(OF[f],4)}, v{vM} offset:{(w ^ f)*2048}")
    for q in (12, 13):
        for r in wo_rd(q): A(r)
    A("s_waitcnt lgkmcnt(6)"); A(cmm(4)); A(wo_rd(14)[0]); A(wo_rd(14)[1])
    A("s_waitcnt lgkmcnt(7)"); A(cmm(5)); A(wo_rd(15)[0]); A(wo_rd(15)[1])
    A("s_waitcnt lgkmcnt(8)"); A(cmm(6))
    mark("c6")
    A(cmm(7)); A(cmm(8)); A(cmm(9))
    A("v_cvt_pk_bf16_f32 v16, v0, v1")
    A(cmm(10))
    A("v_cvt_pk_bf16_f32 v17, v2, v3")
    A(cmm(11))
    A("s_waitcnt lgkmcnt(6)"); A(cmm(12))
    A("v_cvt_pk_bf16_f32 v18, v4, v5")
    A("s_waitcnt lgkmcnt(4)"); A(cmm(13))
    A("v_cvt_pk_bf16_f32 v19, v6, v7")
    A("s_waitcnt lgkmcnt(2)"); A(cmm(14))
    A(f"buffer_store_dwordx4 v[16:19], v{vH1}, {W}, s{sPAR} offen {sc}")
    A("s_waitcnt lgkmcnt(0)"); A(cmm(15))
    A("v_cvt_pk_bf16_f32 v24, v8, v9\nv_cvt_pk_bf16_f32 v25, v10, v11")
    A(f"""s_add_u32 s{sRD1}, s{sPAR}, 8192
s_and_b32 s{sT0}, s{sSTEP}, 3
s_lshl_b32 s{sT0}, s{sT0}, 18
s_add_u32 s{sRD0}, s{sT0}, s{sRDB}
s_add_u32 s{sSTEP}, s{sSTEP}, 1
s_and_b32 s{sT0}, s{sSTEP}, 3""")
    A("v_cvt_pk_bf16_f32 v26, v12, v13\nv_cvt_pk_bf16_f32 v27, v14, v15")
    A(f"buffer_store_dwordx4 v[24:27], v{vH1}, {W}, s{sRD1} offen {sc}")
    mark("h1")
    A(f"ds_read_b128 v[88:91], v{vM} offset:{L_SEL-L_MEM}")
    stage_reads(A, w)
    A(f"""s_add_u32 s{sPUB}, s{sPUB}, 0x20000
s_lshl_b32 s{sT1}, s{sT0}, 13
s_add_u32 s{sSLOT}, s{sT1}, {WS_RING:#x}
s_add_u32 s{sSLOTL}, s{sT1}, {WS_RING - L_MEM + w*2048:#x}
s_lshl_b32 s{sT0}, s{sT0}, 18
s_add_u32 s{sPAR}, s{sT0}, {WS_INB:#x}""")
    delay(D1)
    mark("p1")
    ld1 = f"""buffer_load_dwordx4 v[0:3], v{vM}, {W}, s{sRD0} offen sc1
buffer_load_dwordx4 v[4:7], v{vM}, {W}, s{sRD0} offen offset:1024 sc1"""
    def red1(n): return f"""s_waitcnt vmcnt({n+1})
v_mfma_f32_16x16x32_bf16 v[92:95], v[88:91], v[0:3], 0
s_waitcnt vmcnt({n})
v_mfma_f32_16x16x32_bf16 v[92:95], v[88:91], v[4:7], v[92:95]
v_cmp_eq_u32 vcc, -1, v0
v_cmp_eq_u32 s[{sMK}:{sMK+1}], -1, v4
s_or_b64 s[{sMK+2}:{sMK+3}], vcc, s[{sMK}:{sMK+1}]"""
    A(ld1)
    zero_accs(A)
    A("v_mov_b64 v[8:9], -1\nv_mov_b64 v[10:11], -1")
    delay(E1)
    A(ld1)
    A("s_waitcnt lgkmcnt(0)")
    A(red1(2))
    A(f"s_cbranch_scc1 L_p1b_{tag}")
    A.label(f"L_p1ok_{tag}")
    A(f"""v_add_f32_dpp v92, v92, v92 row_ror:4 row_mask:0xf bank_mask:0xf
v_add_f32_dpp v93, v93, v93 row_ror:4 row_mask:0xf bank_mask:0xf
v_add_f32_dpp v92, v92, v92 row_ror:8 row_mask:0xf bank_mask:0xf
v_add_f32_dpp v93, v93, v93 row_ror:8 row_mask:0xf bank_mask:0xf
v_cmp_u_f32 vcc, v92, v92
s_cbranch_vccnz L_nan_{tag}""")
    A.label(f"L_red_{tag}")
    A(f"""v_cvt_pk_bf16_f32 v92, v92, v93
s_mov_b64 exec, s[{sQM}:{sQM+1}]
v_min_u32 v92, -2, v92
buffer_store_dword v92, v{vH2}, {W}, s{sSLOT} offen {sc}
s_mov_b64 exec, -1""")
    mark("h2")
    A(f"s_cmp_lt_u32 s{sPROG}, 64\ns_cbranch_scc1 L_prg_{tag}")
    A.label(f"L_prd_{tag}")
    A("s_barrier")
    if prof:
        A(f"""s_waitcnt lgkmcnt(0)
s_lshl_b32 s{sT0}, s{S_ROLE}, 2
s_add_u32 s{sT0}, s{sT0}, {w}
s_lshl_b32 s{sT0}, s{sT0}, 6
s_add_u32 s{sT0}, s{sT0}, s{sSTEP}
s_lshl_b32 s{sT0}, s{sT0}, 5
s_add_u32 s{sT0}, s{sT0}, {WS_PROF:#x}
v_mov_b32 v28, 0""")
        for i in range(7):
            r = (sPRF + 2*i) if i < 4 else (96 if i == 6 else 62 if i == 5 else 12)
            A(f"v_mov_b32 v{20+i}, s{r}")
        A(f"v_mov_b32 v27, s{S_TMO}")
        A(f"s_mov_b64 exec, 1\nbuffer_store_dwordx4 v[20:23], v28, {W}, s{sT0} offen\nbuffer_store_dwordx4 v[24:27], v28, {W}, s{sT0} offen offset:16\ns_mov_b64 exec, -1")
    A(f"s_branch L_loop_{tag}")
    A.label(f"L_nan_{tag}")
    spin_guard(A)
    A(f"s_add_u32 s{S_TMO}, s{S_TMO}, {0x100 if False else 0}\ns_and_b32 s{sT0}, s{S_TMO}, 15\ns_cbranch_scc1 L_p1_{tag}")
    A("v_max3_u32 v94, v0, v1, v2\nv_max3_u32 v94, v94, v3, v4\nv_max3_u32 v94, v94, v5, v6")
    A(f"v_max_u32 v94, v94, v7\nv_cmp_eq_u32 vcc, -1, v94\ns_cbranch_vccz L_red_{tag}")
    A.label(f"L_p1_{tag}")
    A(f"""buffer_load_dwordx4 v[0:3], v{vM}, {W}, s{sRD0} offen sc1
buffer_load_dwordx4 v[4:7], v{vM}, {W}, s{sRD0} offen offset:1024 sc1
s_branch L_p1w_{tag}""")
    A.label(f"L_p1b_{tag}")
    A(f"s_add_u32 s{S_TMO}, s{S_TMO}, 0x1000000" if prof else "s_nop 0")
    A.label(f"L_p1w_{tag}")
    A(red1(0))
    A(f"s_cbranch_scc1 L_p1r_{tag}\ns_nop 3\ns_branch L_p1ok_{tag}")
    A.label(f"L_p1r_{tag}")
    spin_guard(A)
    A(f"""s_mov_b64 exec, vcc
buffer_load_dwordx4 v[0:3], v{vM}, {W}, s{sRD0} offen sc1
s_mov_b64 exec, s[{sMK}:{sMK+1}]
buffer_load_dwordx4 v[4:7], v{vM}, {W}, s{sRD0} offen offset:1024 sc1
s_mov_b64 exec, -1
s_branch L_p1w_{tag}""")
    A.label(f"L_p2b_{tag}")
    if prof: A(f"s_add_u32 s{S_TMO}, s{S_TMO}, 0x10000")
    A("s_waitcnt vmcnt(2)")
    A.label(f"L_p2_{tag}")
    A(chk2)
    A(f"s_cbranch_scc0 L_enter_{tag}")
    A.label(f"L_p2r_{tag}")
    spin_guard(A)
    if prof: A(f"s_add_u32 s{S_TMO}, s{S_TMO}, 0xff")
    A(f"""s_mov_b64 exec, vcc
buffer_load_dwordx4 v[72:75], v{vM}, {W}, s{sSLOTL} offen sc1
s_mov_b64 exec, s[{sMK}:{sMK+1}]
buffer_load_dwordx4 v[76:79], v{vM}, {W}, s{sSLOTL} offen offset:1024 sc1
s_mov_b64 exec, -1
s_waitcnt vmcnt(0)
s_branch L_p2_{tag}""")
    A.label(f"L_kvw_{tag}")
    A("s_waitcnt lgkmcnt(0)")
    kv_wait(A, sT0, tag)
    A(f"s_branch L_kvd_{tag}")
    A.label(f"L_prg_{tag}")
    A(f"v_mov_b32 v92, {L_PRG}\nds_read_b128 v[92:95], v92\ns_waitcnt lgkmcnt(0)")
    prog_from(A, 92)
    A(f"s_branch L_prd_{tag}")

def end(A, prof=False):
    A.label("L_chain_end")
    istamp(A, 4, prof)
    A(f"""s_waitcnt vmcnt(0)
s_barrier
s_cmp_lg_u32 s{S_W}, 0
s_cbranch_scc1 L_exit
v_mov_b32 v0, 64
v_mov_b32 v1, 32
s_mov_b64 exec, 1
buffer_store_dword v0, v1, {W}, s{sFLG} offen sc1
s_waitcnt vmcnt(0)
s_endpgm""")

def emit(A, test=False, prof=False, D1=0, D2=0, PTS=None, ends=False, **kw):
    init(A, test, prof or ends)
    for mode, sc in (("fast", ""), ("safe", "sc1")):
        for w in range(4): loop(A, mode, sc, w, prof, D1, D2, PTS, **kw)
    end(A, prof or ends)
```

```python
from asmlib import *

NAME = "parallel_sum__memory_aug_recurrent_mem_tr__mixer_token_mlp__prompt"
WS_XN   = 0x0000000
WS_H2T  = 0x0200000
WS_G    = 0x0400000
WS_YB   = 0x0600000
WS_INB  = 0x0900000
WS_RING = 0x08A0000
WS_FLAG = 0x08B0000
WS_PO   = 0x08B2000
WS_KVM  = 0x1000000
WS_KX   = 0x2000000
WS_VX   = 0x3000000
WS_QX   = 0x4000000
WS_OX   = 0x5000000
WS_PROF = 0x6000000
WS_SIZE = 0x10000000
DBG_CT = 0; DBG_CI = 4; DBG_XM = 8
DBG_WT = 128; DBG_LN = 132; DBG_B1 = 136; DBG_B2 = 140
P_X, P_MEM0, P_WQ, P_WK, P_WV, P_WO = 64, 66, 68, 70, 72, 74
P_W1, P_B1, P_W2, P_B2, P_OUT, P_DBG, P_WS = 80, 82, 84, 86, 88, 90, 92
S_WS = 4; S_DBG = 8
S_XCC = 3; S_W = 28; S_ROLE = 29; S_TMO = 100
TMO = 1 << 17

def spin_guard(A):
    A(f"s_add_u32 s{S_TMO}, s{S_TMO}, 1\ns_bitcmp1_b32 s{S_TMO}, 15\ns_cbranch_scc1 L_exit")


def srd(A, s, p, size):
    A(f"s_mov_b32 s{s}, s{p}\ns_mov_b32 s{s+1}, s{p+1}\ns_mov_b32 s{s+2}, {size:#x}\ns_mov_b32 s{s+3}, 0x20000")

def poll_dbg_ge(A, off, target, vt=2, st=30, sleep=2):
    lab = A.newlabel("L_pd")
    A(f"v_mov_b32 v{vt+1}, {off}")
    A.label(lab)
    A(f"""buffer_load_dword v{vt}, v{vt+1}, s[{S_DBG}:{S_DBG+3}], 0 offen sc1
s_waitcnt vmcnt(0)
v_readfirstlane_b32 s{st}, v{vt}
s_cmp_ge_u32 s{st}, {target}""")
    done = A.newlabel("L_pdd")
    A(f"s_cbranch_scc1 {done}\ns_sleep {sleep}")
    spin_guard(A)
    A(f"s_branch {lab}")
    A.label(done)

def dbg_add(A, off, val=1, vt=2, ret=False, op="add"):
    A(f"""v_mov_b32 v{vt}, {val}
v_mov_b32 v{vt+1}, {off}
s_mov_b64 exec, 1
buffer_atomic_{op} v{vt}, v{vt+1}, s[{S_DBG}:{S_DBG+3}], 0 offen {'sc0' if ret else ''}
s_mov_b64 exec, -1""")

def prologue(A, nwg=256):
    A(f"""s_cmp_ge_u32 s2, {nwg}
s_cbranch_scc1 L_exit
s_load_dwordx16 s[64:79], s[0:1], 0
s_load_dwordx8 s[80:87], s[0:1], 64
s_load_dwordx4 s[88:91], s[0:1], 96
s_load_dwordx2 s[92:93], s[0:1], 112
s_mov_b32 s{S_TMO}, 0
s_getreg_b32 s{S_XCC}, hwreg(HW_REG_XCC_ID)
s_and_b32 s{S_XCC}, s{S_XCC}, 15
v_lshrrev_b32 v1, 6, v0
v_and_b32 v0, 63, v0
v_readfirstlane_b32 s{S_W}, v1
s_waitcnt lgkmcnt(0)""")
    srd(A, S_WS, P_WS, WS_SIZE)
    srd(A, S_DBG, P_DBG, 256)
    A(f"""s_cmp_lg_u32 s{S_W}, 0
s_cbranch_scc1 L_role_wait
s_cmp_lg_u32 s{S_XCC}, 0
s_cbranch_scc1 L_role_worker""")
    dbg_add(A, DBG_CT, ret=True)
    A(f"""s_waitcnt vmcnt(0)
v_readfirstlane_b32 s{S_ROLE}, v2
s_cmp_lt_u32 s{S_ROLE}, 32
s_cbranch_scc1 L_role_done""")
    A.label("L_role_worker")
    dbg_add(A, DBG_WT, ret=True)
    A(f"""s_waitcnt vmcnt(0)
v_readfirstlane_b32 s{S_ROLE}, v2
s_add_u32 s{S_ROLE}, s{S_ROLE}, 32
s_cmp_lt_u32 s{S_ROLE}, {nwg}
s_cbranch_scc1 L_role_done""")
    dbg_add(A, DBG_CT, ret=True)
    A(f"""s_waitcnt vmcnt(0)
v_readfirstlane_b32 s{S_ROLE}, v2""")
    A.label("L_role_done")
    A(f"""v_mov_b32 v2, s{S_ROLE}
v_mov_b32 v3, 0
ds_write_b32 v3, v2
s_waitcnt lgkmcnt(0)""")
    A.label("L_role_wait")
    A(f"""s_barrier
v_mov_b32 v3, 0
ds_read_b32 v2, v3
s_waitcnt lgkmcnt(0)
v_readfirstlane_b32 s{S_ROLE}, v2
s_barrier""")

HEADER = open("cdna_kernels/" + NAME + ".s.ref").read().split("; Override launch")[0]

def finish(A, path, kname=NAME + "_kernel"):
    body = pad_hazards(A.lines, verbose=True)
    txt = HEADER + "; @launch grid=(256,1,1) block=(256,1,1) lds=163840\n"
    txt += '.amdgcn_target "amdgcn-amd-amdhsa--gfx950"\n.text\n'
    txt += f".globl {kname}\n.p2align 8\n.type {kname},@function\n{kname}:\n"
    for ln in body:
        txt += (ln if ln.endswith(":") else "    " + ln) + "\n"
    txt += f""".section .rodata,"a"
.p2align 6
.amdhsa_kernel {kname}
  .amdhsa_next_free_vgpr 512
  .amdhsa_next_free_sgpr 102
  .amdhsa_accum_offset 256
  .amdhsa_group_segment_fixed_size 0
  .amdhsa_kernarg_size 120
  .amdhsa_user_sgpr_count 2
  .amdhsa_user_sgpr_kernarg_segment_ptr 1
  .amdhsa_system_sgpr_workgroup_id_x 1
  .amdhsa_float_denorm_mode_32 3
.end_amdhsa_kernel
"""
    open(path, "w").write(txt)
```

```python
from common import *
import math, struct
W = f"s[{S_WS}:{S_WS+3}]"
def f2u(x): return struct.unpack("<I", struct.pack("<f", x))[0]
sWI = 31
sLO, sHI_ = 32, 33
sMSK = 34
vLN = 255

def setup(A):
    A(f"""s_sub_u32 s{sWI}, s{S_ROLE}, 32
s_mov_b32 s{sLO}, 0x05040100
s_mov_b32 s{sHI_}, 0x07060302
s_mov_b32 s{sMSK}, 0xffff0000
v_mov_b32 v{vLN}, v0""")

def bf16r(A, dst, src, tmp=None):
    A(f"v_cvt_pk_bf16_f32 v{dst}, v{src}, v{src}\nv_and_b32 v{dst}, s{sMSK}, v{dst}")

def red32(A, v, t):
    for r in (1, 2, 4, 8):
        A(f"v_add_f32_dpp v{v}, v{v}, v{v} row_ror:{r} row_mask:0xf bank_mask:0xf")
    A(f"v_mov_b32 v{t}, v{v}\nv_permlane16_swap_b32 v{v}, v{t}\nv_add_f32 v{v}, v{v}, v{t}")

def ln16(A, x, y, t):
    A(f"v_add_f32 v{t}, v{x}, v{x+1}")
    for i in range(2, 16): A(f"v_add_f32 v{t}, v{t}, v{x+i}")
    red32(A, t, t+1)
    A(f"v_mul_f32 v{t}, {f2u(1/512):#x}, v{t}")
    for i in range(16): A(f"v_sub_f32 v{y+i}, v{x+i}, v{t}")
    A(f"v_mul_f32 v{t+2}, v{y}, v{y}")
    for i in range(1, 16): A(f"v_fmac_f32 v{t+2}, v{y+i}, v{y+i}")
    red32(A, t+2, t+1)
    A(f"v_mul_f32 v{t+2}, {f2u(1/512):#x}, v{t+2}")
    bf16r(A, t, t); bf16r(A, t+2, t+2)
    A(f"v_add_f32 v{t+2}, {f2u(1e-5):#x}, v{t+2}")
    bf16r(A, t+2, t+2)
    A(f"v_sqrt_f32 v{t+2}, v{t+2}")
    bf16r(A, t+2, t+2)
    A(f"v_rcp_f32 v{t+2}, v{t+2}")
    for i in range(16):
        A(f"v_sub_f32 v{y+i}, v{x+i}, v{t}")
        bf16r(A, y+i, y+i)
        A(f"v_mul_f32 v{y+i}, v{y+i}, v{t+2}")
        bf16r(A, y+i, y+i)

def ln_task(A, stask, hook=None, younger=0):
    ROW = 1040
    srd(A, 12, P_X, 0x200000)
    A(f"""v_lshrrev_b32 v1, 5, v{vLN}
s_lshl_b32 s36, s{S_W}, 1
v_add_u32 v1, s36, v1
v_and_b32 v2, 31, v{vLN}
v_lshlrev_b32 v3, 10, v1
v_lshl_add_u32 v3, v2, 5, v3
s_lshl_b32 s36, s{stask}, 13
buffer_load_dwordx4 v[4:7], v3, s[12:15], s36 offen
buffer_load_dwordx4 v[8:11], v3, s[12:15], s36 offen offset:16
v_mul_u32_u24 v3, {ROW}, v1
v_lshl_add_u32 v3, v2, 5, v3""")
    if hook: hook()
    A(f"s_waitcnt vmcnt({younger})")
    for i in range(8):
        A(f"v_lshlrev_b32 v{16+2*i}, 16, v{4+i}\nv_and_b32 v{17+2*i}, s{sMSK}, v{4+i}")
    ln16(A, 16, 32, 12)
    for i in range(8): A(f"v_perm_b32 v{4+i}, v{33+2*i}, v{32+2*i}, s{sHI_}")
    A("ds_write_b128 v3, v[4:7]\nds_write_b128 v3, v[8:11] offset:16")
    ln16(A, 32, 16, 12)
    for i in range(8): A(f"v_perm_b32 v{48+i}, v{17+2*i}, v{16+2*i}, s{sHI_}")
    A(f"ds_write_b128 v3, v[48:51] offset:{8*ROW}\nds_write_b128 v3, v[52:55] offset:{8*ROW+16}")
    A(f"""v_and_b32 v1, 7, v{vLN}
v_lshrrev_b32 v2, 3, v{vLN}
s_lshl_b32 s36, s{S_W}, 4
v_add_u32 v2, s36, v2
v_mul_u32_u24 v4, {ROW}, v1
v_lshl_add_u32 v4, v2, 4, v4
v_lshlrev_b32 v5, 8, v2
v_lshl_add_u32 v5, v1, 4, v5
v_bfe_u32 v1, v{vLN}, 2, 2
v_mul_u32_u24 v6, {ROW}, v1
v_and_b32 v1, 3, v{vLN}
v_lshl_add_u32 v6, v1, 3, v6
v_lshrrev_b32 v1, 4, v{vLN}
v_lshl_add_u32 v6, v1, 5, v6
s_lshl_b32 s36, s{S_W}, 8
v_add_u32 v6, s36, v6
v_lshlrev_b32 v7, 4, v{vLN}
s_lshr_b32 s36, s{stask}, 1
s_lshl_b32 s36, s36, 14
s_and_b32 s37, s{stask}, 1
s_lshl_b32 s37, s37, 7
s_add_u32 s36, s36, s37
s_add_u32 s36, s36, {WS_XN:#x}
s_lshl_b32 s37, s{stask}, 13
s_lshl_b32 s38, s{S_W}, 11
s_add_u32 s37, s37, s38
s_add_u32 s37, s37, {WS_H2T:#x}
s_waitcnt lgkmcnt(0)
s_barrier
ds_read_b128 v[8:11], v4
ds_read_b128 v[12:15], v4 offset:128
ds_read_b64_tr_b16 v[16:17], v6 offset:{8*ROW}
ds_read_b64_tr_b16 v[18:19], v6 offset:{12*ROW}
ds_read_b64_tr_b16 v[20:21], v6 offset:{8*ROW+128}
ds_read_b64_tr_b16 v[22:23], v6 offset:{12*ROW+128}
s_waitcnt lgkmcnt(4)
buffer_store_dwordx4 v[8:11], v5, {W}, s36 offen sc1
buffer_store_dwordx4 v[12:15], v5, {W}, s36 offen offset:2048 sc1
s_waitcnt lgkmcnt(0)
buffer_store_dwordx4 v[16:19], v7, {W}, s37 offen sc1
buffer_store_dwordx4 v[20:23], v7, {W}, s37 offen offset:1024 sc1""")

def arrive(A, off):
    lab = A.newlabel("L_arr")
    A(f"s_waitcnt vmcnt(0)\ns_barrier\ns_cmp_lg_u32 s{S_W}, 0\ns_cbranch_scc1 {lab}")
    dbg_add(A, off, vt=250)
    A.label(lab)

def wg_wait_dbg(A, off, target):
    lab = A.newlabel("L_wgw")
    A(f"s_cmp_lg_u32 s{S_W}, 0\ns_cbranch_scc1 {lab}")
    poll_dbg_ge(A, off, target, vt=250, st=30, sleep=4)
    A.label(lab)
    A("s_barrier")

def load_pairs(A, jobs, vaddr, depth, land, wait_extra=0):
    n = len(jobs)
    def issue(i):
        sb, sa, sbb, ia, ib, _, _ = jobs[i]; r = land + 2*(i % depth)
        A(f"s_mov_b32 s36, {sa:#x}\nbuffer_load_dword v{r}, v{vaddr}, s[{sb}:{sb+3}], s36 offen offset:{ia}")
        if sbb != sa: A(f"s_mov_b32 s37, {sbb:#x}")
        A(f"buffer_load_dword v{r+1}, v{vaddr}, s[{sb}:{sb+3}], s{37 if sbb != sa else 36} offen offset:{ib}")
    def retire(i):
        _, _, _, _, _, d0, d1 = jobs[i]; r = land + 2*(i % depth)
        for d, sel, t in ((d0, sLO, land-2), (d1, sHI_, land-1)):
            if d[0] == "v": A(f"v_perm_b32 v{d[1]}, v{r+1}, v{r}, s{sel}")
            else: A(f"v_perm_b32 v{t}, v{r+1}, v{r}, s{sel}\nv_accvgpr_write_b32 a{d[1]}, v{t}")
    return issue, retire, n

def qkv_weights_issue(A):
    A(f"""s_lshr_b32 s40, s{sWI}, 6          ; matrix 0 K, 1 V, 2 Q
s_bfe_u32 s41, s{sWI}, 0x50001       ; head
s_and_b32 s42, s{sWI}, 1             ; parity
s_cmp_eq_u32 s40, 0
s_cselect_b32 s16, s{P_WK}, s{P_WV}
s_cselect_b32 s17, s{P_WK+1}, s{P_WV+1}
s_cmp_eq_u32 s40, 2
s_cselect_b32 s16, s{P_WQ}, s16
s_cselect_b32 s17, s{P_WQ+1}, s17
s_mov_b32 s18, 0x400000
s_mov_b32 s19, 0x20000
v_lshrrev_b32 v60, 4, v{vLN}
v_lshlrev_b32 v60, 16, v60           ; 8g rows
v_and_b32 v61, 15, v{vLN}
v_lshl_add_u32 v60, v61, 2, v60
s_lshl_b32 s36, s41, 8
s_lshl_b32 s37, s{S_W}, 6
s_add_u32 s36, s36, s37
v_add_u32 v60, s36, v60""")
    jobs = []
    for ks in range(16):
        for q in range(4):
            row = 32*ks + 2*q
            jobs.append((16, row*8192, (row+1)*8192, 0, 0, ("a", (ks*2)*4 + q), ("a", (ks*2+1)*4 + q)))
    issue, retire, n = load_pairs(A, jobs, 60, 28, 64)
    for i in range(28): issue(i)
    def finish():
        for i in range(n):
            if i >= 28: A(f"s_waitcnt vmcnt({2*min(27, n-1-i)})")
            retire(i)
            if i + 28 < n: issue(i + 28)
    return finish

def qkv(A):
    A.comment("QKV projection: weights in a[0:127]")
    sSEG, sI, sXO, sOUT, sFL, sM0 = 43, 44, 45, 46, 47, 48
    A(f"""v_lshlrev_b32 v1, 4, v{vLN}
s_lshl_b32 s36, s{S_W}, 13
v_add_u32 v2, s36, v1
s_lshl_b32 s{sXO}, s42, 15
s_add_u32 s{sXO}, s{sXO}, {WS_XN:#x}
s_lshl_b32 s{sM0}, s{S_W}, 13
s_mov_b32 s36, {WS_VX:#x}
s_cmp_eq_u32 s40, 0
s_cselect_b32 s36, {WS_KX:#x}, s36
s_cmp_eq_u32 s40, 2
s_cselect_b32 s36, {WS_QX:#x}, s36
s_lshl_b32 s37, s42, 5
s_add_u32 s37, s37, s41
s_lshl_b32 s37, s37, 13
s_add_u32 s{sOUT}, s36, s37
s_cmp_eq_u32 s40, 1
s_cselect_b32 s36, 11, 10
s_lshl_b32 s36, s{S_W}, s36
s_add_u32 s{sOUT}, s{sOUT}, s36
s_lshl_b32 s36, s41, 7
s_lshl_b32 s37, s40, 3
s_add_u32 s36, s36, s37
s_lshl_b32 s37, s42, 2
s_add_u32 s36, s36, s37
s_add_u32 s{sFL}, s36, {WS_FLAG:#x}
s_mov_b32 s{sI}, 0
v_mov_b32 v3, 0""")
    def dma(slot_expr_sgpr):
        A(f"s_add_u32 m0, s{slot_expr_sgpr}, s{sM0}")
        for k in range(4): A(f"buffer_load_dwordx4 v2, {W}, s{sXO} offen offset:{k*1024} sc1 lds")
        A(f"s_add_u32 m0, m0, 4096\ns_add_u32 s36, s{sXO}, 4096")
        for k in range(4): A(f"buffer_load_dwordx4 v2, {W}, s36 offen offset:{k*1024} sc1 lds")
        A(f"s_add_u32 s{sXO}, s{sXO}, 0x10000")
    for k in range(3):
        A(f"s_mov_b32 s49, {k*32768}"); dma(49)
    for var in ("kq", "v"):
        if var == "kq": A("s_cmp_eq_u32 s40, 1\ns_cbranch_scc1 L_qkv_v")
        A.label(f"L_qkv_{var}")
        A(f"""s_waitcnt vmcnt(10)
s_barrier
s_and_b32 s49, s{sI}, 3
s_lshl_b32 s50, s49, 15
v_add_u32 v5, s50, v1
s_add_u32 s49, s49, 3
s_and_b32 s49, s49, 3
s_lshl_b32 s49, s49, 15""")
        for k in range(4): A(f"ds_read_b128 {vr(8+4*k,4)}, v5 offset:{(k&1)*16384 + (k>>1)*1024}")
        lf = A.newlabel("L_qf"); ld = A.newlabel("L_qd")
        A(f"""s_cmp_lg_u32 s{S_W}, 0
s_cbranch_scc1 {lf}
s_cmp_lt_u32 s{sI}, 2
s_cbranch_scc1 {lf}
s_sub_u32 s36, s{sI}, 1
v_mov_b32 v4, s36
s_mov_b64 exec, 1
buffer_store_dword v4, v3, {W}, s{sFL} offen sc1
s_mov_b64 exec, -1""")
        A.label(lf)
        dma(49)
        ACC = 40
        for ks in range(16):
            if ks + 2 < 16:
                for tt in range(2):
                    A(f"ds_read_b128 {vr(8 + ((ks+2) % 4)*8 + tt*4, 4)}, v5 offset:{tt*16384 + (ks+2)*1024}")
            A(f"s_waitcnt lgkmcnt({min(4, 2*(15-ks))})")
            for tt in range(2):
                for T in range(2):
                    d = vr(ACC + (tt*2+T)*4, 4); x = vr(8 + (ks % 4)*8 + tt*4, 4); wf = ar((ks*2+T)*4, 4)
                    c = "0" if ks == 0 else d
                    A(f"v_mfma_f32_16x16x32_bf16 {d}, {wf}, {x}, {c}" if var == "kq" else f"v_mfma_f32_16x16x32_bf16 {d}, {x}, {wf}, {c}")
        for o in range(2):
            t0, t1 = ((o*2, o*2+1) if var == "kq" else (o, 2+o))
            for k, t in enumerate((t0, t1)):
                A(f"v_cvt_pk_bf16_f32 v{56+o*4+2*k}, v{ACC+t*4}, v{ACC+t*4+1}\nv_cvt_pk_bf16_f32 v{56+o*4+2*k+1}, v{ACC+t*4+2}, v{ACC+t*4+3}")
        if var == "kq":
            A(f"s_add_u32 s36, s{sOUT}, 4096\nbuffer_store_dwordx4 v[56:59], v1, {W}, s{sOUT} offen sc1\nbuffer_store_dwordx4 v[60:63], v1, {W}, s36 offen sc1")
        else:
            A(f"buffer_store_dwordx4 v[56:59], v1, {W}, s{sOUT} offen sc1\nbuffer_store_dwordx4 v[60:63], v1, {W}, s{sOUT} offen offset:1024 sc1")
        A(f"""s_add_u32 s{sOUT}, s{sOUT}, 0x80000
s_add_u32 s{sI}, s{sI}, 1
s_cmp_lt_u32 s{sI}, 32
s_cbranch_scc1 L_qkv_{var}""")
        if var == "kq": A("s_branch L_qkv_end")
    A.label("L_qkv_end")
    lf = A.newlabel("L_qf")
    A(f"""s_waitcnt vmcnt(0)
s_barrier
s_cmp_lg_u32 s{S_W}, 0
s_cbranch_scc1 {lf}
v_mov_b32 v4, 32
s_mov_b64 exec, 1
buffer_store_dword v4, v3, {W}, s{sFL} offen sc1
s_mov_b64 exec, -1""")
    A.label(lf)

def gemm_b(A, which, stile):
    one = which == 1
    nks = 16 if one else 14
    rstride = 3584 if one else 4096
    nb = 28 if one else 32
    FB = WS_H2T if one else WS_G
    srd(A, 12, P_W1 if one else P_W2, 2048*3584 if one else 1792*4096)
    srd(A, 16, P_B1 if one else P_B2, 3584 if one else 4096)
    if one: A(f"s_mul_hi_u32 s41, s{stile}, {((1 << 32) + 27)//28:#x}\ns_mul_i32 s40, s41, 28\ns_sub_u32 s40, s{stile}, s40")
    else: A(f"s_lshr_b32 s41, s{stile}, 5\ns_and_b32 s40, s{stile}, 31")
    A(f"""v_and_b32 v1, 15, v{vLN}
v_lshrrev_b32 v2, 4, v{vLN}
v_mul_u32_u24 v3, {8*rstride}, v2
v_lshl_add_u32 v3, v1, 3, v3
s_mul_i32 s36, s{S_W}, {nks*32*rstride}
s_lshl_b32 s37, s40, 7
s_add_u32 s36, s36, s37
v_add_u32 v3, s36, v3
v_lshlrev_b32 v4, 13, v2""")
    if one: A("v_lshl_add_u32 v4, v1, 4, v4")
    else: A("v_lshrrev_b32 v5, 2, v1\nv_lshl_add_u32 v4, v5, 7, v4\nv_and_b32 v5, 3, v1\nv_lshl_add_u32 v4, v5, 4, v4")
    A(f"""s_mul_i32 s36, s{S_W}, {nks*4*8192}
s_lshl_b32 s37, s41, 11
s_add_u32 s36, s36, s37
s_add_u32 s36, s36, {FB:#x}
v_add_u32 v4, s36, v4""")
    if one: A("s_lshl_b32 s36, s40, 7\nv_lshlrev_b32 v5, 5, v2\nbuffer_load_dwordx4 v[8:11], v5, s[16:19], s36 offen\nbuffer_load_dwordx4 v[12:15], v5, s[16:19], s36 offen offset:16")
    else: A("s_lshl_b32 s36, s40, 7\nv_lshlrev_b32 v5, 3, v1\nbuffer_load_dwordx2 v[8:9], v5, s[16:19], s36 offen")
    NST = 3
    RAW = 16; FR = RAW + 16*NST; PF = FR + 32*NST
    def foff(t): return t*256 if one else (t >> 1)*512 + (t & 1)*64
    def issue(ks):
        st = ks % NST
        for r in range(8):
            A(f"s_mov_b32 s36, {(32*ks + r)*rstride:#x}\nbuffer_load_dwordx2 {vr(RAW + st*16 + 2*r, 2)}, v3, s[12:15], s36 offen")
        A(f"s_mov_b32 s36, {ks*32768:#x}")
        for t in range(8):
            A(f"buffer_load_dwordx4 {vr(FR + st*32 + 4*t, 4)}, v4, {W}, s36 offen offset:{foff(t)} sc1")
    for ks in range(NST): issue(ks)
    for ks in range(nks):
        st = ks % NST
        left = min(NST - 1, nks - 1 - ks)
        A(f"s_waitcnt vmcnt({16*left + 8})")
        for j in range(4):
            for q in range(4):
                A(f"v_perm_b32 v{PF + j*4 + q}, v{RAW + st*16 + 4*q + 2 + (j >> 1)}, v{RAW + st*16 + 4*q + (j >> 1)}, s{sHI_ if j & 1 else sLO}")
        for t in range(8):
            A(f"s_waitcnt vmcnt({16*left + 7 - t})")
            for j in range(4):
                d = ar((t*4 + j)*4, 4); c = "0" if ks == 0 else d
                a_, b_ = vr(PF + j*4, 4), vr(FR + st*32 + 4*t, 4)
                A(f"v_mfma_f32_16x16x32_bf16 {d}, {a_}, {b_}, {c}" if one else f"v_mfma_f32_16x16x32_bf16 {d}, {b_}, {a_}, {c}")
        if ks + NST < nks: issue(ks + NST)
    A(f"v_lshlrev_b32 v6, 4, v{vLN}\ns_nop 7")
    for w in range(4):
        lab = A.newlabel("L_gw")
        A(f"s_cmp_lg_u32 s{S_W}, {w}\ns_cbranch_scc1 {lab}")
        for dst in range(4):
            if dst == w:
                for k in range(32): A(f"v_accvgpr_read_b32 v{16+k}, a{dst*32 + k}")
            else:
                off = (dst*3 + ((w ^ dst) - 1))*8192
                A(f"v_add_u32 v7, {off}, v6")
                for k in range(8): A(f"ds_write_b128 v7, {ar(dst*32 + 4*k, 4)} offset:{k*1024}")
        A.label(lab)
    A(f"s_mul_i32 s36, s{S_W}, {3*8192}\nv_add_u32 v7, s36, v6\ns_waitcnt lgkmcnt(0)\ns_barrier")
    for s_ in range(3):
        for k in range(8): A(f"ds_read_b128 {vr(48 + s_*32 + 4*k, 4)}, v7 offset:{s_*8192 + k*1024}")
        if s_ > 0:
            A("s_waitcnt lgkmcnt(8)")
            for k in range(32): A(f"v_add_f32 v{16+k}, v{16+k}, v{48 + (s_-1)*32 + k}")
    A("s_waitcnt lgkmcnt(0)")
    for k in range(32): A(f"v_add_f32 v{16+k}, v{16+k}, v{48 + 64 + k}")
    if one:
        for i in range(8): A(f"v_lshlrev_b32 v{48+2*i}, 16, v{8+i}\nv_and_b32 v{49+2*i}, s{sMSK}, v{8+i}")
        c1 = -2*math.sqrt(2/math.pi)*math.log2(math.e)
        A(f"s_mov_b32 s36, {f2u(c1):#x}\ns_mov_b32 s37, {f2u(c1*0.044715):#x}\nv_mov_b32 v64, s36")
        for tl in range(2):
            for j in range(4):
                for r in range(4):
                    x = 16 + tl*16 + j*4 + r
                    bf16r(A, x, x)
                    A(f"v_add_f32 v{x}, v{x}, v{48 + 4*r + j}")
                    bf16r(A, x, x)
                    A(f"""v_mul_f32 v65, v{x}, v{x}
v_fma_f32 v65, v65, s37, v64
v_mul_f32 v65, v65, v{x}
v_exp_f32 v65, v65
v_add_f32 v65, 1.0, v65
v_rcp_f32 v65, v65
v_mul_f32 v{x}, v{x}, v65""")
        A(f"""v_lshlrev_b32 v5, 14, v2
v_lshl_add_u32 v5, v1, 4, v5
s_lshl_b32 s36, s40, 16
s_lshl_b32 s37, s41, 11
s_add_u32 s36, s36, s37
s_lshl_b32 s37, s{S_W}, 9
s_add_u32 s36, s36, s37
s_add_u32 s36, s36, {WS_G:#x}
s_add_u32 s37, s36, 8192""")
        for tl in range(2):
            for hh in range(2):
                for q in range(4):
                    e0 = 8*hh + 2*q; e1 = e0 + 1
                    A(f"v_cvt_pk_bf16_f32 v{68 + (tl*2+hh)*4 + q}, v{16 + tl*16 + (e0 & 3)*4 + (e0 >> 2)}, v{16 + tl*16 + (e1 & 3)*4 + (e1 >> 2)}")
                A(f"buffer_store_dwordx4 {vr(68 + (tl*2+hh)*4, 4)}, v5, {W}, s{36+hh} offen offset:{tl*256} sc1")
    else:
        A(f"v_lshlrev_b32 v48, 16, v8\nv_and_b32 v49, s{sMSK}, v8\nv_lshlrev_b32 v50, 16, v9\nv_and_b32 v51, s{sMSK}, v9")
        A(f"""v_lshlrev_b32 v5, 12, v1
v_lshl_add_u32 v5, v2, 4, v5
s_lshl_b32 s36, s40, 16
s_lshl_b32 s37, s41, 8
s_add_u32 s36, s36, s37
s_lshl_b32 s37, s{S_W}, 6
s_add_u32 s36, s36, s37
s_add_u32 s36, s36, {WS_YB:#x}""")
        for j in range(4):
            for tl in range(2):
                for r in range(4):
                    x = 16 + tl*16 + j*4 + r
                    bf16r(A, x, x)
                    A(f"v_add_f32 v{x}, v{x}, v{48+j}")
                for q in range(2):
                    x = 16 + tl*16 + j*4 + 2*q
                    A(f"v_cvt_pk_bf16_f32 v{68 + j*4 + tl*2 + q}, v{x}, v{x+1}")
            A(f"buffer_store_dwordx4 {vr(68 + j*4, 4)}, v5, {W}, s36 offen offset:{j*1024} sc1")
    arrive(A, DBG_B1 if one else DBG_B2)

def outproj(A):
    sP, sU, sPB = 40, 41, 42
    srd(A, 12, P_WO, 0x400000); srd(A, 16, P_X, 0x200000); srd(A, 20, P_OUT, 0x200000)
    A(f"""s_and_b32 s{sP}, s{sWI}, 15
s_lshr_b32 s{sU}, s{sWI}, 4
v_and_b32 v1, 15, v{vLN}
v_lshrrev_b32 v2, 4, v{vLN}
v_lshlrev_b32 v3, 13, v2            ; 8g rows
v_lshl_add_u32 v3, v1, 2, v3
s_lshl_b32 s36, s{S_W}, 20
s_lshl_b32 s37, s{sP}, 6
s_add_u32 s36, s36, s37
v_add_u32 v3, s36, v3""")
    jobs = []
    for kk in range(32):
        for q, (ra, rb) in enumerate(((0, 2), (4, 6), (1, 3), (5, 7))):
            base = (32*kk + (ra & 4))*1024
            jobs.append((12, base, base, (ra & 3)*1024, (rb & 3)*1024, ("a", (kk*2)*4 + q), ("a", (kk*2+1)*4 + q)))
    issue, retire, n = load_pairs(A, jobs, 3, 28, 64)
    for i in range(28): issue(i)
    for i in range(n):
        A(f"s_waitcnt vmcnt({2*min(27, n-1-i)})")
        retire(i)
        if i + 28 < n: issue(i + 28)
    wg_wait_dbg(A, DBG_B2, 128)
    A(f"""v_lshlrev_b32 v4, 4, v{vLN}
v_lshlrev_b32 v5, 2, v{vLN}
v_lshlrev_b32 v6, 10, v1
v_lshl_add_u32 v6, v2, 4, v6
s_lshl_b32 s36, s{sP}, 6
v_add_u32 v6, s36, v6               ; tok*1024 + P*64 + g*16
s_lshl_b32 s36, s{S_W}, 11
v_add_u32 v7, s36, v4
s_mov_b32 s{sPB}, 0""")
    A.label("L_op_loop")
    A(f"""s_lshr_b32 s43, s{sU}, 1          ; segment
s_and_b32 s36, s43, 3
s_lshl_b32 s36, s36, 7
s_add_u32 s44, s36, {WS_PO:#x}
s_lshr_b32 s43, s43, 2
s_lshl_b32 s45, s{sU}, 14""")
    lx = A.newlabel("L_opx")
    A(f"""s_cmp_lg_u32 s{S_W}, 0
s_cbranch_scc1 {lx}
s_add_u32 s36, s45, {WS_YB:#x}
buffer_load_dwordx4 v[8:11], v6, s[16:19], s45 offen
buffer_load_dwordx4 v[12:15], v6, {W}, s36 offen sc1""")
    A.label(lx)
    A.label("L_op_poll")
    A(f"""s_mov_b32 exec_hi, 0
buffer_load_dword v16, v5, {W}, s44 offen sc1
s_waitcnt vmcnt(0)
v_cmp_ge_u32 vcc, s43, v16
s_mov_b64 exec, -1
s_cbranch_vccz L_op_go
s_sleep 2""")
    spin_guard(A)
    A("s_branch L_op_poll")
    A.label("L_op_go")
    A(f"""s_mov_b32 s{S_TMO}, 0
s_lshl_b32 s36, s{sU}, 17
s_lshl_b32 s37, s{S_W}, 15
s_add_u32 s36, s36, s37
s_add_u32 s36, s36, {WS_OX:#x}""")
    for kk in range(32):
        if kk and kk % 4 == 0: A("s_add_u32 s36, s36, 4096")
        A(f"buffer_load_dwordx4 {vr(64 + 4*kk, 4)}, v4, {W}, s36 offen offset:{(kk % 4)*1024} sc1")
    for kk in range(32):
        A(f"s_waitcnt vmcnt({31-kk})")
        for T in range(2):
            d = vr(24 + 4*T, 4)
            A(f"v_mfma_f32_16x16x32_bf16 {d}, {ar((kk*2+T)*4, 4)}, {vr(64 + 4*kk, 4)}, {'0' if kk == 0 else d}")
    ly = A.newlabel("L_opy"); lz = A.newlabel("L_opz")
    A(f"""v_add_u32 v17, s{sPB}, v7
s_cmp_eq_u32 s{S_W}, 0
s_cbranch_scc1 {ly}
s_nop 4
ds_write_b128 v17, v[24:27]
ds_write_b128 v17, v[28:31] offset:1024
s_waitcnt lgkmcnt(0)
s_barrier
s_branch {lz}""")
    A.label(ly)
    A("s_barrier")
    for s_ in range(3):
        A(f"ds_read_b128 {vr(32 + 8*s_, 4)}, v17 offset:{(s_+1)*2048}\nds_read_b128 {vr(36 + 8*s_, 4)}, v17 offset:{(s_+1)*2048 + 1024}")
    for s_ in range(3):
        A(f"s_waitcnt lgkmcnt({4 - 2*s_})")
        for k in range(8): A(f"v_add_f32 v{24+k}, v{24+k}, v{32 + 8*s_ + k}")
    for r in range(4):
        for T in range(2):
            x = 24 + 4*T + r
            bf16r(A, x, x)
            A(f"v_lshlrev_b32 v18, 16, v{8+r}" if T == 0 else f"v_and_b32 v18, s{sMSK}, v{8+r}")
            A(f"v_add_f32 v{x}, v{x}, v18")
            bf16r(A, x, x)
            A(f"v_lshlrev_b32 v18, 16, v{12+r}" if T == 0 else f"v_and_b32 v18, s{sMSK}, v{12+r}")
            A(f"v_add_f32 v{x}, v{x}, v18")
        A(f"v_cvt_pk_bf16_f32 v{20+r}, v{24+r}, v{28+r}")
    A("buffer_store_dwordx4 v[20:23], v6, s[20:23], s45 offen")
    A.label(lz)
    A(f"""s_xor_b32 s{sPB}, s{sPB}, 8192
s_add_u32 s{sU}, s{sU}, 12
s_cmp_lt_u32 s{sU}, 128
s_cbranch_scc1 L_op_loop
s_waitcnt vmcnt(0)
s_endpgm""")

def attention(A):
    sH, sSEG, sFL, sRDY, sPM, sSC, sHM = 40, 41, 42, 43, 44, 46, 48
    Q, K, V, KV, KF = 64, 96, 128, 160, 176
    A(f"""s_sub_u32 s{sH}, s{sWI}, 192
s_mov_b32 s{sSEG}, s{S_W}
s_lshl_b32 s36, s{sH}, 7
s_add_u32 s{sFL}, s36, {WS_FLAG:#x}
s_mov_b32 s{sRDY}, 0
s_mov_b32 s{sPM}, 0
s_mov_b32 s{sSC}, {f2u(math.log2(math.e)/math.sqrt(128.0)):#x}
s_mov_b32 s{sSC+1}, s{sSC}
s_mov_b32 s{sHM}, 0
s_mov_b32 s{sHM+1}, -1
v_and_b32 v1, 15, v{vLN}
v_lshrrev_b32 v2, 4, v{vLN}
v_lshlrev_b32 v3, 4, v{vLN}
v_lshrrev_b32 v6, 1, v2
v_lshlrev_b32 v6, 8, v6
v_lshl_add_u32 v6, v1, 4, v6
v_and_b32 v7, 1, v2
v_lshl_add_u32 v6, v7, 3, v6
s_lshl_b32 s36, s{S_W}, 11
v_add_u32 v4, s36, v6
v_lshrrev_b32 v6, 2, v1
v_lshl_add_u32 v6, v2, 2, v6
v_lshlrev_b32 v6, 4, v6
v_and_b32 v7, 1, v1
v_lshl_add_u32 v6, v7, 3, v6
v_add_u32 v5, s36, v6
v_lshlrev_b32 v6, 2, v2
v_mov_b32 v8, 0
v_mov_b32 v9, {f2u(-1e9*math.sqrt(128.0)):#x}
v_mov_b32 v56, 0x3f803f80
v_mov_b32 v57, 0x3f803f80
v_mov_b32 v58, 0x3f803f80
v_mov_b32 v59, 0x3f803f80
v_mov_b32 v61, 0
v_mov_b32 v62, 0""")
    for r in range(4): A(f"v_add_u32 v7, {r}, v6\nv_cmp_le_u32 s[{50+2*r}:{51+2*r}], v7, v1")
    A.label("L_at_loop")
    A(f"s_cmp_gt_u32 s{sRDY}, s{sSEG}\ns_cbranch_scc1 L_at_have")
    A.label("L_at_poll")
    A(f"""buffer_load_dwordx4 v[10:13], v8, {W}, s{sFL} offen sc1
buffer_load_dwordx2 v[14:15], v8, {W}, s{sFL} offen offset:16 sc1
s_waitcnt vmcnt(0)
v_min3_u32 v10, v10, v12, v14
v_min3_u32 v11, v11, v13, v15
v_lshlrev_b32 v10, 1, v10
v_lshl_or_b32 v11, v11, 1, 1
v_min_u32 v10, v10, v11
v_readfirstlane_b32 s{sRDY}, v10
s_cmp_gt_u32 s{sRDY}, s{sSEG}
s_cbranch_scc1 L_at_have
s_sleep 4""")
    spin_guard(A)
    A("s_branch L_at_poll")
    A.label("L_at_have")
    A(f"""s_lshl_b32 s36, s{sSEG}, 5
s_add_u32 s45, s36, s{sH}
s_lshl_b32 s36, s45, 13""")
    for base, reg in ((WS_QX, Q), (WS_KX, K), (WS_VX, V)):
        A(f"s_add_u32 s37, s36, {base:#x}\ns_add_u32 s38, s37, 4096")
        for k in range(8): A(f"buffer_load_dwordx4 {vr(reg + 4*k, 4)}, v3, {W}, s{37 + (k >> 2)} offen offset:{(k & 3)*1024} sc1")
    A("s_waitcnt vmcnt(8)")
    for j in range(4):
        for d, kt, qt in ((16, 0, 0), (20, 0, 1), (24, 1, 1)):
            A(f"v_mfma_f32_16x16x32_bf16 {vr(d,4)}, {vr(K + kt*16 + 4*j, 4)}, {vr(Q + qt*16 + 4*j, 4)}, {'0' if j == 0 else vr(d,4)}")
    A(f"s_cmp_gt_u32 s{sPM}, s{sSEG}\ns_cbranch_scc1 L_at_havem")
    A.label("L_at_pollm")
    A(f"""buffer_load_dword v10, v8, {W}, s{sFL} offen offset:32 sc1
s_waitcnt vmcnt(0)
v_readfirstlane_b32 s{sPM}, v10
s_cmp_gt_u32 s{sPM}, s{sSEG}
s_cbranch_scc1 L_at_havem
s_sleep 1""")
    spin_guard(A)
    A("s_branch L_at_pollm")
    A.label("L_at_havem")
    A(f"s_mov_b32 s{S_TMO}, 0\ns_lshl_b32 s36, s45, 12\ns_add_u32 s36, s36, {WS_KVM:#x}")
    for k in range(4): A(f"buffer_load_dwordx4 {vr(KV + 4*k, 4)}, v3, {W}, s36 offen offset:{k*1024} sc1")
    for r in range(4):
        A(f"v_cndmask_b32 v{16+r}, v9, v{16+r}, s[{50+2*r}:{51+2*r}]\nv_cndmask_b32 v{24+r}, v9, v{24+r}, s[{50+2*r}:{51+2*r}]")
    for k in range(4):
        A(f"s_waitcnt vmcnt({3-k})\nds_write_b64 v4, {vr(KV + 4*k, 2)} offset:{k*512}")
    A("s_waitcnt lgkmcnt(0)")
    for j in range(4):
        A(f"ds_read_b64_tr_b16 {vr(KF + 4*j, 2)}, v5 offset:{j*512}\nds_read_b64_tr_b16 {vr(KF + 4*j + 2, 2)}, v5 offset:{j*512 + 256}")
    for j in range(4):
        A(f"s_waitcnt lgkmcnt({6 - 2*j})")
        for d, qt in ((28, 0), (32, 1)):
            A(f"v_mfma_f32_16x16x32_bf16 {vr(d,4)}, {vr(KF + 4*j, 4)}, {vr(Q + qt*16 + 4*j, 4)}, {'0' if j == 0 else vr(d,4)}")
    A(f"""s_lshl_b32 s36, s{sSEG}, 6
s_add_u32 s36, s36, s{sH}
s_lshl_b32 s36, s36, 12
s_add_u32 s36, s36, {WS_OX:#x}""")
    for qt in range(2):
        m0 = 28 + 4*qt
        toks = [16, 17, 18, 19] if qt == 0 else list(range(20, 28))
        A(f"v_cndmask_b32 v{m0}, v{m0}, v{m0+2}, s[{sHM}:{sHM+1}]\nv_cndmask_b32 v{m0+1}, v{m0+1}, v{m0+3}, s[{sHM}:{sHM+1}]")
        A(f"v_max_f32 v36, v{m0}, v{m0+1}")
        for i in range(0, len(toks), 2): A(f"v_max3_f32 v36, v36, v{toks[i]}, v{toks[i+1]}")
        A("v_mov_b32 v37, v36\nv_permlane32_swap_b32 v36, v37\nv_max_f32 v36, v36, v37\nv_mov_b32 v37, v36\nv_permlane16_swap_b32 v36, v37\nv_max_f32 v36, v36, v37")
        A(f"v_mul_f32 v36, s{sSC}, v36")
        for b in toks[::2] + [m0]:
            A(f"v_pk_fma_f32 {vr(b,2)}, {vr(b,2)}, s[{sSC}:{sSC+1}], v[36:37] op_sel_hi:[1,1,0] neg_lo:[0,0,1] neg_hi:[0,0,1]")
        for b in toks + [m0, m0+1]: A(f"v_exp_f32 v{b}, v{b}")
        for i in range(4):
            if 2*i < len(toks): A(f"v_cvt_pk_bf16_f32 v{40+i}, v{toks[2*i]}, v{toks[2*i+1]}")
            else: A(f"v_mov_b32 v{40+i}, 0")
        A(f"v_cvt_pk_bf16_f32 v60, v{m0}, v{m0+1}\nv_cvt_pk_bf16_f32 v63, v{m0}, v{m0+1}")
        A("v_mfma_f32_16x16x32_bf16 v[44:47], v[56:59], v[40:43], 0")
        OB = 192
        for et in range(8):
            A(f"v_mfma_f32_16x16x32_bf16 {vr(OB + 4*et, 4)}, {vr(V + 4*et, 4)}, v[40:43], 0")
        A("v_mfma_f32_16x16x16_bf16 v[44:47], v[56:57], v[60:61], v[44:47]")
        for et in range(8):
            A(f"v_mfma_f32_16x16x16_bf16 {vr(OB + 4*et, 4)}, {vr(KV + 4*(et >> 1) + 2, 2)}, {vr(60 + 2*(et & 1), 2)}, {vr(OB + 4*et, 4)}")
        A("v_rcp_f32 v44, v44")
        for j in range(4):
            for i in range(0, 8, 2): A(f"v_pk_mul_f32 {vr(OB + 8*j + i, 2)}, {vr(OB + 8*j + i, 2)}, v[44:45] op_sel_hi:[1,0]")
            for i in range(4): A(f"v_cvt_pk_bf16_f32 v{224 + 4*j + i}, v{OB + 8*j + 2*i}, v{OB + 8*j + 2*i + 1}")
            A(f"buffer_store_dwordx4 {vr(224 + 4*j, 4)}, v3, {W}, s36 offen offset:{j*1024} sc1")
        if qt == 0: A("s_add_u32 s36, s36, 0x20000")
    A(f"""s_lshr_b32 s36, s{sSEG}, 2
s_add_u32 s36, s36, 1
v_mov_b32 v10, s36
s_lshl_b32 s36, s{S_W}, 7
s_lshl_b32 s37, s{sH}, 2
s_add_u32 s36, s36, s37
s_add_u32 s36, s36, {WS_PO:#x}
s_waitcnt vmcnt(0)
s_mov_b64 exec, 1
buffer_store_dword v10, v8, {W}, s36 offen sc1
s_mov_b64 exec, -1
s_add_u32 s{sSEG}, s{sSEG}, 4
s_cmp_lt_u32 s{sSEG}, 64
s_cbranch_scc1 L_at_loop
s_waitcnt vmcnt(0)
s_endpgm""")

def emit(A):
    A.label("L_worker")
    setup(A)
    A(f"s_cmp_ge_u32 s{sWI}, 192\ns_cbranch_scc1 L_att_wg")
    fin = []
    ln_task(A, sWI, hook=lambda: fin.append(qkv_weights_issue(A)), younger=56)
    arrive(A, DBG_LN)
    fin[0]()
    wg_wait_dbg(A, DBG_CI, 32)
    wg_wait_dbg(A, DBG_LN, 256)
    qkv(A)
    A(f"s_cmp_ge_u32 s{sWI}, 80\ns_cbranch_scc1 L_no_b1\ns_add_u32 s39, s{sWI}, 32\ns_barrier\ns_branch L_b1")
    A.label("L_att_wg")
    ln_task(A, sWI)
    A(f"s_waitcnt lgkmcnt(0)\ns_barrier\ns_add_u32 s39, s{sWI}, 32")
    ln_task(A, 39)
    lab = A.newlabel("L_arr")
    A(f"s_waitcnt vmcnt(0)\ns_barrier\ns_cmp_lg_u32 s{S_W}, 0\ns_cbranch_scc1 {lab}")
    dbg_add(A, DBG_LN, val=2, vt=250)
    A.label(lab)
    wg_wait_dbg(A, DBG_CI, 32)
    wg_wait_dbg(A, DBG_LN, 256)
    A(f"s_sub_u32 s39, s{sWI}, 192")
    A.label("L_b1")
    gemm_b(A, 1, 39)
    A(f"s_cmp_ge_u32 s{sWI}, 192\ns_cbranch_scc1 L_att")
    A.label("L_no_b1")
    A(f"s_cmp_lt_u32 s{sWI}, 64\ns_cbranch_scc1 L_no_b2\ns_sub_u32 s39, s{sWI}, 64")
    wg_wait_dbg(A, DBG_B1, 112)
    gemm_b(A, 2, 39)
    A.label("L_no_b2")
    outproj(A)
    A.label("L_att")
    attention(A)
```

```python
import sys
from common import *
import chain, workers
def build_src(path, **kw):
    TL[0] = kw.pop('tl', False)
    A = Asm()
    prologue(A)
    A(f"s_cmp_ge_u32 s{S_ROLE}, 32\ns_cbranch_scc0 L_chain\ns_branch L_worker")
    A.label("L_exit")
    A("s_endpgm")
    A.label("L_chain")
    for k_, v_ in dict(D1=64, E1=0, F1=160, D2=96, E2=128).items(): kw.setdefault(k_, v_)
    chain.emit(A, test=False, **kw)
    workers.emit(A)
    finish(A, path)
if __name__ == "__main__":
    build_src(sys.argv[1] if len(sys.argv) > 1 else "cdna_kernels/" + NAME + ".s")
```

```python
from common import *
import math, struct

L_WO = 0; L_MEM = 131072; L_STG = L_MEM + 8192; L_QIM = L_STG + 16384; L_KIM = L_QIM + 2048
L_SEL = L_KIM + 2048; L_PRG = L_SEL + 1024
MF, KX, QF, KF, VX = 0, 32, 64, 80, 96
vM, vMR, vWO, vIDX, vH1, vH2, vQW, vQR = 104, 105, 106, 107, 108, 109, 110, 111
vMW = 11
TA = 112; PUB = 120; P0A = 124; P0B = 126
WV = 128
WK, WQ = 0, 128
sSTEP, sPAR, sRD0, sRD1, sSLOT, sSLOTL, sKX, sVX, sPUB, sPROG, sM0K, sM0V, sT0, sT1, sRING_R = 31, 32, 33, 36, 37, 38, 39, 40, 41, 42, 43, 44, 45, 46, 47
sSC = 34
sHI = 48
sTAG = 101
sQM = 94; sMK = 16
sRDB = 47; sONE = 98
sFLG = 50
sPRF = 52
W = f"s[{S_WS}:{S_WS+3}]"

def f2u(x): return struct.unpack("<I", struct.pack("<f", x))[0]

def kv_wait(A, need_sgpr_expr_reg, tag):
    lab = A.newlabel("L_kvw"); done = A.newlabel("L_kvd")
    A(f"s_cmp_ge_u32 s{sPROG}, s{need_sgpr_expr_reg}\ns_cbranch_scc1 {done}")
    A.label(lab)
    A(f"""v_mov_b32 v76, 0
buffer_load_dwordx4 v[72:75], v76, {W}, s{sFLG} offen sc1
s_waitcnt vmcnt(0)""")
    prog_from(A, 72)
    A(f"s_cmp_ge_u32 s{sPROG}, s{need_sgpr_expr_reg}\ns_cbranch_scc1 {done}\ns_sleep 1")
    spin_guard(A)
    A(f"s_branch {lab}")
    A.label(done)

def prog_from(A, b):
    _prog_from(A, b)
    A(f"s_max_u32 s{sPROG}, s{sPROG}, s30")

def _prog_from(A, b):
    A(f"""v_min_u32 v{b}, v{b}, v{b+2}
v_min_u32 v{b+1}, v{b+1}, v{b+3}
v_lshlrev_b32 v{b}, 1, v{b}
v_lshl_or_b32 v{b+1}, v{b+1}, 1, 1
v_min_u32 v{b}, v{b}, v{b+1}
v_readfirstlane_b32 s30, v{b}""")

def dma_kv(A):
    A(f"""s_mov_b32 m0, s{sM0K}
s_nop 0
buffer_load_dwordx4 v{vM}, {W}, s{sKX} offen sc1 lds
buffer_load_dwordx4 v{vM}, {W}, s{sKX} offen offset:1024 sc1 lds
s_mov_b32 m0, s{sM0V}
s_nop 0
buffer_load_dwordx4 v{vM}, {W}, s{sVX} offen sc1 lds
buffer_load_dwordx4 v{vM}, {W}, s{sVX} offen offset:1024 sc1 lds
s_add_u32 s{sKX}, s{sKX}, 0x40000
s_add_u32 s{sVX}, s{sVX}, 0x40000""")

def stage_reads(A, w=None):
    for i in range(8):
        A(f"ds_read_b128 {vr(KX+4*i,4)}, v{vM} offset:{L_STG-L_MEM+i*1024}")
    for i in range(2):
        if w is None: A(f"ds_read_b128 {vr(VX+4*i,4)}, v{vMW} offset:{L_STG-L_MEM+8192+i*1024}")
        else: A(f"ds_read_b128 {vr(VX+4*i,4)}, v{vM} offset:{L_STG-L_MEM+8192+w*2048+i*1024}")

def zero_accs(A):
    for b in (80, 64, TA):
        for i in range(0, 8, 2): A(f"v_mov_b64 {vr(b+i,2)}, 0")

def istamp(A, i, prof, b=14):
    if not prof: return
    A(f"""s_memtime s[52:53]
s_memrealtime s[54:55]
s_lshl_b32 s56, s{S_ROLE}, 2
s_add_u32 s56, s56, s{S_W}
s_lshl_b32 s56, s56, 7
s_add_u32 s56, s56, {WS_PROF + 0x100000 + i*8:#x}
s_waitcnt lgkmcnt(0)
v_mov_b32 v14, s52
v_mov_b32 v15, s54
v_mov_b32 v9, 0
s_mov_b64 exec, 1
buffer_store_dwordx2 v[14:15], v9, {W}, s56 offen
s_mov_b64 exec, -1""")

def init(A, test=False, prof=False):
    h, w = S_ROLE, S_W
    istamp(A, 0, prof)
    A(f"""v_lshlrev_b32 v1, 4, v0
v_add_u32 v{vM}, {L_MEM}, v1
s_lshl_b32 s{sT0}, s{w}, 11
v_add_u32 v{vMW}, s{sT0}, v{vM}
s_lshl_b32 s{sT0}, s{w}, 15
v_add_u32 v{vWO}, s{sT0}, v1
v_and_b32 v2, 15, v0          ; n
v_lshrrev_b32 v3, 4, v0       ; g
v_mov_b32 v4, 0x88884444
v_mov_b32 v5, 0xddddeeee
v_cmp_gt_u32 vcc, 8, v2
v_cndmask_b32 v{vIDX}, v5, v4, vcc
v_lshrrev_b32 v4, 2, v2
v_lshlrev_b32 v4, 1, v4
s_lshl_b32 s{sT0}, s{w}, 3
v_add_u32 v4, s{sT0}, v4
v_add_u32 v5, s{h}, v4
v_and_b32 v5, 31, v5
v_lshlrev_b32 v5, 6, v5
v_lshl_add_u32 v5, v4, 13, v5
v_and_b32 v4, 3, v2
v_lshl_add_u32 v5, v4, 4, v5
v_lshl_add_u32 v{vH1}, v3, 11, v5
; vH2 = h*256 + w*64 + g*16 + (n&3)*4
v_lshlrev_b32 v5, 2, v4
v_lshl_add_u32 v5, v3, 4, v5
s_lshl_b32 s{sT0}, s{h}, 8
s_lshl_b32 s{sT1}, s{w}, 6
s_add_u32 s{sT0}, s{sT0}, s{sT1}
v_add_u32 v{vH2}, s{sT0}, v5
v_lshrrev_b32 v4, 1, v3
v_lshlrev_b32 v5, 8, v4
v_lshl_add_u32 v5, v2, 4, v5
v_and_b32 v4, 1, v3
v_lshl_add_u32 v5, v4, 3, v5
s_lshl_b32 s{sT0}, s{w}, 9
s_add_u32 s{sT0}, s{sT0}, {L_QIM}
v_add_u32 v{vQW}, s{sT0}, v5
v_lshrrev_b32 v4, 2, v2
v_lshl_add_u32 v4, v3, 2, v4
v_lshlrev_b32 v4, 4, v4
v_and_b32 v5, 1, v2
v_lshl_add_u32 v4, v5, 3, v4
v_add_u32 v{vQR}, {L_QIM}, v4
v_mov_b32 v{P0A+1}, 0
v_mov_b32 v{P0B}, 0
; scalars
s_mov_b32 s{sSC}, {f2u(math.log2(math.e)/math.sqrt(128.0)):#x}
s_mov_b32 s{sSC+1}, s{sSC}
s_mov_b32 s{sHI}, 0
s_mov_b32 s{sHI+1}, -1
s_mov_b32 s{sSTEP}, 0
s_mov_b32 s{sPAR}, {WS_INB:#x}
s_lshl_b32 s{sT0}, s{h}, 13
s_add_u32 s{sRDB}, s{sT0}, {WS_INB - L_MEM:#x}
s_mov_b32 s{sONE}, 0x3f803f80
s_mov_b32 s{sONE+1}, 0x3f803f80
s_lshl_b32 s{sT1}, s{w}, 11
s_add_u32 s{sT0}, s{sT0}, s{sT1}
s_add_u32 s{sKX}, s{sT0}, {WS_KX - L_MEM:#x}
s_add_u32 s{sVX}, s{sT0}, {WS_VX - L_MEM:#x}
s_lshl_b32 s{sT0}, s{h}, 12
s_lshl_b32 s{sT1}, s{w}, 10
s_add_u32 s{sT0}, s{sT0}, s{sT1}
s_add_u32 s{sPUB}, s{sT0}, {WS_KVM - L_MEM:#x}
s_lshl_b32 s{sT0}, s{w}, 11
s_add_u32 s{sM0K}, s{sT0}, {L_STG}
s_add_u32 s{sM0V}, s{sT0}, {L_STG + 8192}
s_lshl_b32 s{sT0}, s{h}, 7
s_add_u32 s{sFLG}, s{sT0}, {WS_FLAG:#x}
s_mov_b32 s{sPROG}, {64 if test else 0}
v_mov_b32 v4, 0
v_mov_b32 v5, 0
v_mov_b32 v6, 0
v_mov_b32 v7, 0
s_mov_b32 s{sTAG}, 1
s_add_u32 s{sT0}, s{sRDB}, 0x40000
s_add_u32 s{sT1}, s{sRDB}, 0x80000
s_add_u32 s30, s{sRDB}, 0xc0000
buffer_store_dwordx4 v[4:7], v{vMW}, {W}, s{sRDB} offen sc1
buffer_store_dwordx4 v[4:7], v{vMW}, {W}, s{sRDB} offen offset:1024 sc1
buffer_store_dwordx4 v[4:7], v{vMW}, {W}, s{sT0} offen sc1
buffer_store_dwordx4 v[4:7], v{vMW}, {W}, s{sT0} offen offset:1024 sc1
buffer_store_dwordx4 v[4:7], v{vMW}, {W}, s{sT1} offen sc1
buffer_store_dwordx4 v[4:7], v{vMW}, {W}, s{sT1} offen offset:1024 sc1
buffer_store_dwordx4 v[4:7], v{vMW}, {W}, s30 offen sc1
buffer_store_dwordx4 v[4:7], v{vMW}, {W}, s30 offen offset:1024 sc1
v_mov_b32 v8, -1
s_mov_b32 s{sQM}, 0x000f000f
s_mov_b32 s{sQM+1}, 0x000f000f
s_mov_b64 exec, s[{sQM}:{sQM+1}]
s_mov_b32 s{sT0}, {WS_RING:#x}
s_mov_b32 s{sT1}, {WS_RING+16384:#x}
buffer_store_dword v8, v{vH2}, {W}, s{sT0} offen sc1
buffer_store_dword v8, v{vH2}, {W}, s{sT1} offen sc1
s_mov_b32 s{sT0}, {WS_RING+8192:#x}
s_mov_b32 s{sT1}, {WS_RING+24576:#x}
buffer_store_dword v8, v{vH2}, {W}, s{sT0} offen sc1
buffer_store_dword v8, v{vH2}, {W}, s{sT1} offen sc1
s_mov_b64 exec, -1
v_lshlrev_b32 v9, 2, v0
s_lshl_b32 s{sT0}, s{w}, 5
s_add_u32 s{sT0}, s{sT0}, s{sFLG}
s_lshl_b32 s{sT1}, s{w}, 7
s_lshl_b32 s30, s{h}, 2
s_add_u32 s{sT1}, s{sT1}, s30
s_add_u32 s{sT1}, s{sT1}, {WS_PO:#x}
s_mov_b64 exec, 0xff
buffer_store_dword v4, v9, {W}, s{sT0} offen sc1
s_mov_b64 exec, 1
buffer_store_dword v4, v9, {W}, s{sT1} offen sc1
s_mov_b64 exec, -1
""")
    A(f"""v_lshrrev_b32 v4, 1, v3
v_lshlrev_b32 v4, 2, v4
v_and_b32 v5, 1, v3
v_lshl_add_u32 v4, v5, 4, v4
v_lshlrev_b32 v4, 13, v4
v_lshl_add_u32 v4, v2, 2, v4
s_lshl_b32 s{sT0}, s{h}, 8
s_lshl_b32 s{sT1}, s{w}, 6
s_add_u32 s{sT0}, s{sT0}, s{sT1}
v_add_u32 v1, s{sT0}, v4
v_lshrrev_b32 v4, 1, v3
v_lshlrev_b32 v4, 3, v4
v_add_u32 v4, v4, v5
v_lshlrev_b32 v4, 10, v4
v_lshl_add_u32 v4, v2, 4, v4
s_lshl_b32 s{sT0}, s{h}, 17
s_lshl_b32 s{sT1}, s{w}, 8
s_add_u32 s{sT0}, s{sT0}, s{sT1}
v_add_u32 v10, s{sT0}, v4
s_mov_b32 s60, 0x05040100
s_mov_b32 s61, 0x07060302""")
    srd(A, 12, P_WK, 0x400000); srd(A, 16, P_WQ, 0x400000); srd(A, 20, P_WV, 0x400000); srd(A, 24, P_WO, 0x400000)
    jobs = []
    for (sb, kind, base) in ((12, "a", WK), (16, "a", WQ), (20, "v", WV)):
        for t in range(8):
            for jp in range(8):
                row = 64*t + 32*(jp >> 2) + 8*((jp >> 1) & 1) + (jp & 1)
                jobs.append((sb, row, kind, base + (t*2)*8 + jp, base + (t*2+1)*8 + jp))
    DEPTH = 28
    LB = 16
    def issue(i):
        sb, row, _, _, _ = jobs[i]; r = LB + 2*(i % DEPTH)
        A(f"s_mov_b32 s{sT0}, {row*8192:#x}\ns_mov_b32 s{sT1}, {(row+2)*8192:#x}")
        A(f"buffer_load_dword v{r}, v1, s[{sb}:{sb+3}], s{sT0} offen\nbuffer_load_dword v{r+1}, v1, s[{sb}:{sb+3}], s{sT1} offen")
    def retire(i):
        _, _, kind, d0, d1 = jobs[i]; r = LB + 2*(i % DEPTH)
        if kind == "v":
            A(f"v_perm_b32 v{d0}, v{r+1}, v{r}, s60\nv_perm_b32 v{d1}, v{r+1}, v{r}, s61")
        else:
            A(f"v_perm_b32 v12, v{r+1}, v{r}, s60\nv_perm_b32 v13, v{r+1}, v{r}, s61\nv_accvgpr_write_b32 a{d0}, v12\nv_accvgpr_write_b32 a{d1}, v13")
    for i in range(DEPTH): issue(i)
    A(f"s_waitcnt vmcnt({2*DEPTH})\ns_barrier")
    lab = A.newlabel("L_ci")
    A(f"s_cmp_lg_u32 s{w}, 0\ns_cbranch_scc1 {lab}")
    A(f"s_lshl_b32 s{sT0}, 1, s{S_XCC}")
    A(f"""v_mov_b32 v14, s{sT0}
v_mov_b32 v15, {DBG_XM}
s_mov_b64 exec, 1
buffer_atomic_or v14, v15, s[{S_DBG}:{S_DBG+3}], 0 offen sc0
s_waitcnt vmcnt(0)
v_mov_b32 v14, 1
v_mov_b32 v15, {DBG_CI}
buffer_atomic_add v14, v15, s[{S_DBG}:{S_DBG+3}], 0 offen
s_mov_b64 exec, -1""")
    A.label(lab)
    n = len(jobs)
    for i in range(n):
        rem = min(DEPTH - 1, n - 1 - i)
        A(f"s_waitcnt vmcnt({2*rem})")
        retire(i)
        if i + DEPTH < n: issue(i + DEPTH)
    istamp(A, 1, prof)
    tl(A, 2, vt=14)
    for rnd in range(2):
        for fi in range(2):
            fp = rnd*2 + fi
            A(f"s_xor_b32 s{sT1}, s{w}, {fp}\ns_lshl_b32 s{sT1}, s{sT1}, 15")
            for jp in range(8):
                e = 16*(jp >> 2) + 2*(jp & 3)
                A(f"s_add_u32 s{sT0}, s{sT1}, {e*1024}")
                A(f"buffer_load_dwordx4 {vr(16 + fi*32 + jp*4, 4)}, v10, s[24:27], s{sT0} offen")
        for fi in range(2):
            fp = rnd*2 + fi
            A(f"s_waitcnt vmcnt({8 if fi == 0 else 0})")
            for P in range(4):
                for half in range(2):
                    for q in range(4):
                        A(f"v_mov_b32 v{80 + ((P*2+half) % 4)*4 + q}, v{16 + fi*32 + (half*4+q)*4 + P}")
                    A(f"ds_write_b128 v{vWO}, {vr(80 + ((P*2+half) % 4)*4, 4)} offset:{(P*4+fp)*2048 + half*1024}")
                    if (P*2+half) % 4 == 3: A("s_waitcnt lgkmcnt(0)")
    istamp(A, 2, prof)
    tl(A, 3, vt=14)
    A(f"""v_lshrrev_b32 v4, 2, v2      ; g'
v_and_b32 v5, 3, v2           ; r
v_and_b32 v6, 1, v4
v_lshlrev_b32 v6, 4, v6
v_mov_b32 v7, 0x3f80
v_lshlrev_b32 v7, v6, v7      ; value
v_lshrrev_b32 v4, 1, v4
v_lshl_add_u32 v4, v5, 1, v4""")
    for q in range(4):
        A(f"v_cmp_eq_u32 vcc, {q}, v4\nv_cndmask_b32 v{12+q}, 0, v7, vcc")
    A(f"ds_write_b128 v{vM}, v[12:15] offset:{L_SEL - L_MEM}")
    A(f"s_mov_b32 s{sT0}, 2")
    A(f"v_mov_b32 v12, 0\nv_lshlrev_b32 v13, 2, v0\nv_add_u32 v13, {L_PRG}, v13\nds_write_b32 v13, v12")
    kv_wait(A, sT0, "i")
    dma_kv(A)
    srd(A, 12, P_MEM0, 8192)
    A(f"""v_and_b32 v4, 7, v0
v_lshlrev_b32 v4, 10, v4          ; m*1024
v_lshrrev_b32 v5, 1, v3
v_lshl_add_u32 v4, v5, 6, v4
v_and_b32 v5, 1, v3
v_lshl_add_u32 v4, v5, 3, v4      ; 4*(gA&1)
s_lshl_b32 s{sT0}, s{w}, 8
v_mov_b32 v6, s60
v_mov_b32 v7, s61
v_cmp_gt_u32 vcc, 8, v2
v_cndmask_b32 v6, v7, v6, vcc""")
    for k in range(8):
        A(f"buffer_load_dwordx2 {vr(16+2*k,2)}, v4, s[12:15], s{sT0} offen offset:{(k>>2)*128 + (k&3)*16}")
    poll_dbg_ge(A, DBG_CI, 32, vt=72)
    A(f"""v_mov_b32 v73, {DBG_XM}
buffer_load_dword v72, v73, s[{S_DBG}:{S_DBG+3}], 0 offen sc1
s_waitcnt vmcnt(0) lgkmcnt(0)
v_readfirstlane_b32 s{sT0}, v72
s_bcnt1_i32_b32 s51, s{sT0}
s_barrier""")
    stage_reads(A)
    zero_accs(A)
    for k in range(8):
        A(f"v_perm_b32 v{72+k}, v{17+2*k}, v{16+2*k}, v6")
    A(f"s_lshl_b32 s{sT0}, s{w}, 11\ns_add_u32 s{sRDB}, s{sRDB}, s{sT0}")
    istamp(A, 3, prof)
    tl(A, 4, vt=14)
    A(f"s_waitcnt lgkmcnt(0)\ns_cmp_eq_u32 s51, 1\ns_cbranch_scc0 L_go_safe")
    for mode in ("fast", "safe"):
        A.label(f"L_go_{mode}")
        for k in range(3): A(f"s_cmp_eq_u32 s{w}, {k}\ns_cbranch_scc1 L_enter_{mode}{k}")
        A(f"s_branch L_enter_{mode}3")

def interleave(A, main, fill, per=1, start=0, every=1):
    fill = list(fill)
    for i, m in enumerate(main):
        A(m)
        if i >= start and (i - start) % every == 0:
            for _ in range(per):
                if fill: A(fill.pop(0))
    return fill

def loop(A, mode, sc, w, prof=False, D1=0, D2=0, PTS=None, RT=False, PUBAT='max', E1=64, E2=128, SMV=0, F1=160, NEX=2):
    tag = f"{mode}{w}"
    pts = PTS if PTS else ["enter", "kend", "send", "oex", "h1", "p1", "h2"]
    def mark(name):
        A.lines.append(f"; MARK {name}")
        if prof and name in pts:
            i = pts.index(name)
            r = (sPRF + 2*i) if i < 4 else (96 if i == 6 else 62 if i == 5 else 12)
            A(f"s_mem{'real' if RT else ''}time s[{r}:{r+1}]")
    def delay(n):
        while n > 0:
            k = min(16, (n+3)//4); A(f"s_nop {k-1}"); n -= 4*k
    A(".p2align 6")
    A.label(f"L_loop_{tag}")
    A(f"""s_add_u32 s{sT1}, s{sSTEP}, 2
s_and_b32 s{sT1}, s{sT1}, 3
s_lshl_b32 s{sT1}, s{sT1}, 13
s_add_u32 s{sT1}, s{sT1}, {WS_RING:#x}
s_mov_b64 exec, s[{sQM}:{sQM+1}]
buffer_store_dword v30, v{vH2}, {W}, s{sT1} offen {sc}
s_mov_b64 exec, -1
s_mov_b32 m0, s{sM0K}""")
    delay(D2)
    def ld2(b): return f"""buffer_load_dwordx4 {vr(b,4)}, v{vM}, {W}, s{sSLOTL} offen sc1
buffer_load_dwordx4 {vr(b+4,4)}, v{vM}, {W}, s{sSLOTL} offen offset:1024 sc1"""
    def chk2(b): return f"""v_max3_u32 v26, v{b}, v{b+1}, v{b+2}
v_max3_u32 v27, v{b+4}, v{b+5}, v{b+6}
v_max_u32 v26, v26, v{b+3}
v_max_u32 v27, v27, v{b+7}
v_cmp_eq_u32 vcc, -1, v26
v_cmp_eq_u32 s[{sMK}:{sMK+1}], -1, v27
s_or_b64 s[{sMK+2}:{sMK+3}], vcc, s[{sMK}:{sMK+1}]"""
    def wr2(b): return f"""ds_write_b128 v{vM}, {vr(b,4)} offset:{w*2048}
ds_write_b128 v{vM}, {vr(b+4,4)} offset:{w*2048+1024}"""
    def mld(b, so): return f"""s_or_b64 exec, vcc, 1
buffer_load_dwordx4 {vr(b,4)}, v{vM}, {W}, s{so} offen sc1
s_or_b64 exec, s[{sMK}:{sMK+1}], 1
buffer_load_dwordx4 {vr(b+4,4)}, v{vM}, {W}, s{so} offen offset:1024 sc1
s_mov_b64 exec, -1"""
    A(ld2(72))
    delay(E2)
    A(ld2(88))
    A("s_waitcnt vmcnt(2)")
    mark("enter")
    A(wr2(72))
    A(chk2(72))
    A(f"s_cbranch_scc1 L_p2b_{tag}")
    A.label(f"L_go_{tag}")
    A("s_waitcnt lgkmcnt(0)")
    mark("b0a")
    A("s_barrier")
    mark("b0b")
    for t in range(8):
        A(f"ds_read_b128 {vr(MF+4*t,4)}, v{vM} offset:{t*1024}")
    def proj(acc, kind, base, first=False):
        out = []
        for t in range(8):
            for T in range(2):
                b = base + (t*2+T)*8
                B = ar(b, 8) if kind == "a" else vr(b, 8)
                s = f"v_smfmac_f32_16x16x64_bf16 {vr(acc+4*T,4)}, {vr(MF+4*t,4)}, {B}, v{vIDX}"
                if first and T == 0: s = f"s_waitcnt lgkmcnt({7-t})\n" + s
                out.append(s)
        return out
    def swaps(b): return [f"v_permlane32_swap_b32 v{b+i}, v{b+4+i}" for i in range(4)]
    def padds(b): return [f"v_pk_add_f32 {vr(b+i,2)}, {vr(b+i,2)}, {vr(b+4+i,2)}" for i in (0, 2)]
    side = [f"buffer_load_dwordx4 v{vM}, {W}, s{sKX} offen sc1 lds",
            f"buffer_load_dwordx4 v{vM}, {W}, s{sKX} offen offset:1024 sc1 lds\ns_mov_b32 m0, s{sM0V}",
            f"buffer_load_dwordx4 v{vM}, {W}, s{sVX} offen sc1 lds",
            f"buffer_load_dwordx4 v{vM}, {W}, s{sVX} offen offset:1024 sc1 lds"]
    rest = interleave(A, proj(64, "a", WQ, first=True), side, per=1, start=1, every=4)
    assert not rest
    A("s_waitcnt vmcnt(4)")
    mark("qend")
    def adds(b): return [f"v_add_f32 v{b+i}, v{b+i}, v{b+4+i}" for i in range(4)]
    qepi = swaps(64) + adds(64) + ["v_cvt_pk_bf16_f32 v68, v64, v65", "v_cvt_pk_bf16_f32 v69, v66, v67\n" + f"ds_write_b64 v{vQW}, v[68:69]"]
    kp = proj(80, "a", WK)
    A(kp[0]); A(f"s_cmp_lt_u32 s{sSTEP}, 62\ns_cselect_b32 s{sT1}, 0x40000, 0")
    A(kp[1]); A(f"s_add_u32 s{sKX}, s{sKX}, s{sT1}\ns_add_u32 s{sVX}, s{sVX}, s{sT1}")
    rest = interleave(A, kp[2:12], qepi, per=1)
    assert not rest
    A(kp[12])
    if w == 3:
        A(f"v_mov_b32 v72, s{sSTEP}"); A(kp[13]); A("v_mov_b32 v73, 32"); A(kp[14])
        A(f"s_mov_b64 exec, 1\nbuffer_store_dword v72, v73, {W}, s{sFLG} offen sc1\ns_mov_b64 exec, -1")
    elif w == 1:
        A(f"s_cmp_lt_u32 s{sPROG}, 64\ns_cbranch_scc1 L_prf_{tag}")
        A.label(f"L_prfd_{tag}")
        A(kp[13]); A(kp[14])
    else:
        A(kp[13]); A(kp[14])
    A(kp[15])
    A("s_waitcnt lgkmcnt(0)")
    mark("b1a")
    A("s_barrier")
    mark("b1b")
    qtr = []; ktr = []
    for j in range(4):
        qtr += [f"ds_read_b64_tr_b16 {vr(QF+4*j,2)}, v{vQR} offset:{j*512}", f"ds_read_b64_tr_b16 {vr(QF+4*j+2,2)}, v{vQR} offset:{j*512+256}"]
        ktr += [f"ds_read_b64_tr_b16 {vr(KF+4*j,2)}, v{vQR} offset:{2048+j*512}", f"ds_read_b64_tr_b16 {vr(KF+4*j+2,2)}, v{vQR} offset:{2048+j*512+256}"]
    mark("kend")
    seq = [(P, 0) for P in range(4)] + [(P, f) for P in range(4) for f in (1, 2, 3)]
    buf = [32, 40, 48, 56, 64, 72, 80, 88, 24, 96, 32, 40, 48, 56, 64, 72]
    def wo_rd(q):
        P, f = seq[q]
        return [f"ds_read_b128 {vr(buf[q]+4*hf,4)}, v{vWO} offset:{(P*4+f)*2048+hf*1024}" for hf in range(2)]
    S1, S2, S0 = 0, 4, 8
    def smm(j, which):
        c = lambda b: "0" if j == 0 else vr(b, 4)
        D, Aop = {1: (S1, KX+4*j), 2: (S2, KX+16+4*j), 0: (S0, KF+4*j)}[which]
        return f"v_mfma_f32_16x16x32_bf16 {vr(D,4)}, {vr(Aop,4)}, {vr(QF+4*j,4)}, {c(D)}"
    vp = proj(TA, "v", WV)
    kepi = swaps(80) + adds(80) + [f"v_cvt_pk_bf16_f32 v{PUB}, v80, v81", f"v_cvt_pk_bf16_f32 v{PUB+1}, v82, v83\nds_write_b64 v{vQW}, {vr(PUB,2)} offset:{L_KIM-L_QIM}"]
    rest = interleave(A, vp[0:4], qtr, per=2)
    rest = interleave(A, vp[4:8], kepi[0:4], per=1)
    A("s_waitcnt lgkmcnt(0)")
    A(smm(0, 1)); A(kepi[4]); A(kepi[5]); A(smm(1, 1)); A(kepi[6]); A(kepi[7]); A(smm(2, 1)); A(kepi[8]); A(kepi[9]); A(smm(3, 1))
    rest = interleave(A, vp[8:12], wo_rd(0) + wo_rd(1), per=1)
    assert not rest
    A("s_waitcnt lgkmcnt(4)")
    mark("b2a")
    A("s_barrier")
    mark("b2b")
    rest = interleave(A, vp[12:16], ktr, per=2)
    mark("vend")
    vepi = swaps(TA) + adds(TA) + [f"v_cvt_pk_bf16_f32 v{PUB+2}, v{TA}, v{TA+1}", f"v_cvt_pk_bf16_f32 v{PUB+3}, v{TA+2}, v{TA+3}"]
    A(smm(0, 2)); A(f"v_mov_b64 v[16:17], s[{sONE}:{sONE+1}]"); A(wo_rd(8)[0])
    A(smm(1, 2)); A(f"v_mov_b64 v[18:19], s[{sONE}:{sONE+1}]"); A(wo_rd(8)[1])
    A(smm(2, 2)); A(vepi[0]); A(smm(3, 2)); A(vepi[1])
    A("s_waitcnt lgkmcnt(2)")
    pre = []
    for q in (2, 3, 4, 5, 6, 7): pre += wo_rd(q)
    P = lambda: pre.pop(0)
    A(smm(0, 0)); A(vepi[2]); A(smm(1, 0)); A(vepi[3]); A(smm(2, 0))
    A(P()); A("v_max3_f32 v12, v0, v1, v2\nv_max3_f32 v13, v3, v4, v5")
    A(smm(3, 0))
    A(P()); A("v_max3_f32 v12, v12, v6, v7\nv_max_f32 v12, v12, v13\nv_mov_b32 v13, v12")
    A(vepi[4]); A(vepi[5])
    A("v_permlane32_swap_b32 v12, v13")
    mark("send")
    A("v_max3_f32 v14, v8, v9, v10\nv_max3_f32 v12, v12, v13, v11\nv_max_f32 v12, v12, v14\nv_mov_b32 v13, v12")
    A(f"v_cndmask_b32 v8, v8, v10, s[{sHI}:{sHI+1}]\nv_cndmask_b32 v9, v9, v11, s[{sHI}:{sHI+1}]")
    A(f"v_permlane16_swap_b32 v12, v13\nv_max_f32 v12, v12, v13\nv_mul_f32 v12, s{sSC}, v12")
    mark("max")
    for i in range(0, 10, 2):
        A(f"v_pk_fma_f32 {vr(i,2)}, {vr(i,2)}, s[{sSC}:{sSC+1}], v[12:13] op_sel_hi:[1,1,0] neg_lo:[0,0,1] neg_hi:[0,0,1]")
    for i in range(8):
        A(f"v_exp_f32 v{i}, v{i}")
        if i < NEX: A(P())
    A("v_cvt_pk_bf16_f32 v12, v0, v1\nv_cvt_pk_bf16_f32 v13, v2, v3\nv_cvt_pk_bf16_f32 v14, v4, v5\nv_cvt_pk_bf16_f32 v15, v6, v7")
    A("v_exp_f32 v8, v8\nv_exp_f32 v9, v9")
    O0, O1 = 0, 4
    mark("exp")
    A(f"v_mfma_f32_16x16x32_bf16 v[20:23], v[16:19], v[12:15], 0")
    A(P()); A(vepi[6]); A(vepi[7])
    A(f"v_mfma_f32_16x16x32_bf16 {vr(O0,4)}, {vr(VX,4)}, v[12:15], 0")
    A(P()); A(vepi[8]); A(vepi[9])
    A(f"v_mfma_f32_16x16x32_bf16 {vr(O1,4)}, {vr(VX+4,4)}, v[12:15], 0")
    A(f"v_cvt_pk_bf16_f32 v{P0A}, v8, v9\nv_cvt_pk_bf16_f32 v{P0B+1}, v8, v9")
    A(f"v_permlane32_swap_b32 v{PUB+2}, v{PUB+3}")
    A(f"v_mfma_f32_16x16x16_bf16 v[20:23], v[16:17], {vr(P0A,2)}, v[20:23]")
    A(P()); A("v_mov_b64 v[8:9], 0\nv_mov_b64 v[10:11], 0")
    A(f"v_mfma_f32_16x16x16_bf16 {vr(O0,4)}, {vr(PUB+2,2)}, {vr(P0A,2)}, {vr(O0,4)}")
    A(P()); A("v_mov_b64 v[12:13], 0\nv_mov_b64 v[14:15], 0")
    A(f"v_mfma_f32_16x16x16_bf16 {vr(O1,4)}, {vr(PUB+2,2)}, {vr(P0B,2)}, {vr(O1,4)}")
    mark("pv")
    A(P())
    A("v_rcp_f32 v20, v20")
    A(f"buffer_store_dwordx4 {vr(PUB,4)}, v{vM}, {W}, s{sPUB} offen sc1")
    while len(pre) > 2: A(P())
    for i in range(0, 8, 2):
        A(f"v_pk_mul_f32 {vr(O0+i,2)}, {vr(O0+i,2)}, v[20:21] op_sel_hi:[1,0]")
    for i in range(4):
        A(f"v_cvt_pk_bf16_f32 v{16+i}, v{O0+2*i}, v{O0+2*i+1}")
    A(f"ds_write_b128 v{vM}, v[16:19] offset:{w*2048}")
    A("v_mov_b64 v[0:1], 0\nv_mov_b64 v[2:3], 0\nv_mov_b64 v[4:5], 0\nv_mov_b64 v[6:7], 0")
    mark("oex")
    OF = [16, TA, TA+4, 20]
    def cmm(q):
        P_, f = seq[q]
        return f"v_smfmac_f32_16x16x64_bf16 {vr(4*P_,4)}, {vr(OF[f],4)}, {vr(buf[q],8)}, v{vIDX} abid:1"
    A("s_waitcnt lgkmcnt(7)")
    r9 = wo_rd(9)
    A(cmm(2)); A(P()); A(cmm(3)); A(P()); A(cmm(0)); A(r9[0]); A(cmm(1)); A(r9[1])
    A(f"s_cmp_eq_u32 s{sSTEP}, 63\ns_cbranch_scc1 L_chain_end")
    mark("own")
    A(f"s_waitcnt vmcnt(1) lgkmcnt(4)")
    mark("b3a")
    A("s_barrier")
    mark("b3b")
    for f in (1, 2, 3):
        A(f"ds_read_b128 {vr(OF[f],4)}, v{vM} offset:{(w ^ f)*2048}")
    rd = []
    for q in (10, 11, 12, 13, 14, 15): rd += wo_rd(q)
    for r in rd[:4]: A(r)
    A("s_waitcnt lgkmcnt(6)"); A(cmm(4)); A(rd[4])
    A("s_waitcnt lgkmcnt(6)"); A(cmm(5)); A(rd[5])
    A("s_waitcnt lgkmcnt(6)"); A(cmm(6)); A(rd[6])
    mark("c6")
    A(cmm(7)); A(rd[7]); A(cmm(8)); A(rd[8]); A(cmm(9)); A(rd[9]); A("v_cvt_pk_bf16_f32 v16, v0, v1")
    A("s_waitcnt lgkmcnt(8)"); A(cmm(10)); A(rd[10]); A("v_cvt_pk_bf16_f32 v17, v2, v3")
    A("s_waitcnt lgkmcnt(7)"); A(cmm(11)); A(rd[11]); A(f"v_and_or_b32 v16, v16, -2, s{sTAG}")
    A("s_waitcnt lgkmcnt(6)"); A(cmm(12)); A("v_cvt_pk_bf16_f32 v18, v4, v5\nv_cvt_pk_bf16_f32 v19, v6, v7")
    A(f"buffer_store_dwordx4 v[16:19], v{vH1}, {W}, s{sPAR} offen {sc}")
    A("s_waitcnt lgkmcnt(4)"); A(cmm(13))
    A("s_waitcnt lgkmcnt(2)"); A(cmm(14))
    A("s_waitcnt lgkmcnt(0)"); A(cmm(15))
    A(f"v_cvt_pk_bf16_f32 v24, v8, v9\nv_cvt_pk_bf16_f32 v25, v10, v11\nv_and_or_b32 v24, v24, -2, s{sTAG}")
    A(f"""s_add_u32 s{sRD1}, s{sPAR}, 8192
s_and_b32 s{sT0}, s{sSTEP}, 3
s_lshl_b32 s{sT0}, s{sT0}, 18
s_add_u32 s{sRD0}, s{sT0}, s{sRDB}
s_add_u32 s{sSTEP}, s{sSTEP}, 1""")
    A("v_cvt_pk_bf16_f32 v26, v12, v13\nv_cvt_pk_bf16_f32 v27, v14, v15")
    A(f"buffer_store_dwordx4 v[24:27], v{vH1}, {W}, s{sRD1} offen {sc}")
    mark("h1")
    A(f"ds_read_b128 v[88:91], v{vM} offset:{L_SEL-L_MEM}")
    stage_reads(A, w)
    A(f"""s_add_u32 s{sPUB}, s{sPUB}, 0x20000
s_and_b32 s{sT0}, s{sSTEP}, 3
s_lshl_b32 s{sT1}, s{sT0}, 13
s_add_u32 s{sSLOT}, s{sT1}, {WS_RING:#x}
s_add_u32 s{sSLOTL}, s{sT1}, {WS_RING - L_MEM + w*2048:#x}
s_lshl_b32 s{sT0}, s{sT0}, 18
s_add_u32 s{sPAR}, s{sT0}, {WS_INB:#x}""")
    if prof:
        A(f"""s_waitcnt lgkmcnt(0)
s_lshl_b32 s30, s{S_ROLE}, 2
s_add_u32 s30, s30, {w}
s_lshl_b32 s30, s30, 6
s_add_u32 s30, s30, s{sSTEP}
s_lshl_b32 s30, s30, 5
s_add_u32 s30, s30, {WS_PROF:#x}
v_mov_b32 v8, 0""")
        for i in range(7):
            r = (sPRF + 2*i) if i < 4 else (96 if i == 6 else 62 if i == 5 else 12)
            A(f"v_mov_b32 v{0+i}, s{r}")
        A(f"v_mov_b32 v7, s{S_TMO}")
        A(f"s_mov_b64 exec, 1\nbuffer_store_dwordx4 v[0:3], v8, {W}, s30 offen\nbuffer_store_dwordx4 v[4:7], v8, {W}, s30 offen offset:16\ns_mov_b64 exec, -1")
        D1 = max(0, D1 - 96)
    delay(D1)
    A("s_waitcnt lgkmcnt(0)\ns_barrier")
    mark("p1")
    def ld1(b): return f"""buffer_load_dwordx4 {vr(b,4)}, v{vM}, {W}, s{sRD0} offen sc1
buffer_load_dwordx4 {vr(b+4,4)}, v{vM}, {W}, s{sRD0} offen offset:1024 sc1"""
    def red1(n, b): return f"""s_waitcnt vmcnt({n+1})
v_mfma_f32_16x16x32_bf16 v[92:95], v[88:91], {vr(b,4)}, 0
v_and_b32 v28, 1, v{b}
s_waitcnt vmcnt({n})
v_mfma_f32_16x16x32_bf16 v[92:95], v[88:91], {vr(b+4,4)}, v[92:95]
v_and_b32 v29, 1, v{b+4}
v_cmp_ne_u32 vcc, s{sTAG}, v28
v_cmp_ne_u32 s[{sMK}:{sMK+1}], s{sTAG}, v29
s_or_b64 s[{sMK+2}:{sMK+3}], vcc, s[{sMK}:{sMK+1}]"""
    zl = [f"v_mov_b64 {vr(b+i,2)}, 0" for b in (80, 64, TA) for i in range(0, 8, 2)] + ["v_mov_b32 v30, -1"]
    def spread(items, cycles):
        gap = max(0, cycles // max(1, len(items)) - 4)
        for z in items:
            A(z); delay(gap)
    A(ld1(0))
    spread(zl[:5], E1)
    A(ld1(8))
    spread(zl[5:], F1)
    A(red1(2, 0))
    A(f"s_cbranch_scc1 L_p1b_{tag}")
    A.label(f"L_p1ok_{tag}")
    A(f"""v_add_f32_dpp v92, v92, v92 row_ror:4 row_mask:0xf bank_mask:0xf
v_add_f32_dpp v93, v93, v93 row_ror:4 row_mask:0xf bank_mask:0xf
s_mov_b64 exec, -1
v_add_f32_dpp v92, v92, v92 row_ror:8 row_mask:0xf bank_mask:0xf
v_add_f32_dpp v93, v93, v93 row_ror:8 row_mask:0xf bank_mask:0xf
v_cvt_pk_bf16_f32 v92, v92, v93
s_mov_b64 exec, s[{sQM}:{sQM+1}]
v_min_u32 v92, -2, v92
buffer_store_dword v92, v{vH2}, {W}, s{sSLOT} offen {sc}
s_mov_b64 exec, -1
s_bfe_u32 s{sTAG}, s{sSTEP}, 0x10002
s_xor_b32 s{sTAG}, s{sTAG}, 1""")
    mark("h2")
    A(f"s_cmp_lt_u32 s{sPROG}, 64\ns_cbranch_scc1 L_prg_{tag}")
    A.label(f"L_prd_{tag}")
    A(f"""s_add_u32 s{sT0}, s{sSTEP}, 2
s_min_u32 s{sT0}, s{sT0}, 64
s_cmp_lt_u32 s{sPROG}, s{sT0}
s_cbranch_scc1 L_kvw_{tag}""")
    A.label(f"L_kvd_{tag}")
    A(f"s_branch L_loop_{tag}")
    A.label(f"L_p1b_{tag}")
    if prof: A(f"s_add_u32 s{S_TMO}, s{S_TMO}, 0x1000000")
    A.label(f"L_p1r_{tag}")
    A(mld(0, sRD0))
    A(red1(2, 8))
    A(f"s_cbranch_scc0 L_p1k_{tag}")
    A(mld(8, sRD0))
    spin_guard(A)
    A(red1(2, 0))
    A(f"s_cbranch_scc1 L_p1r_{tag}")
    A.label(f"L_p1k_{tag}")
    A(f"s_nop 2\ns_branch L_p1ok_{tag}")
    A.label(f"L_p2b_{tag}")
    if prof: A(f"s_add_u32 s{S_TMO}, s{S_TMO}, 0x10000")
    A.label(f"L_p2r_{tag}")
    A(mld(72, sSLOTL))
    A("s_waitcnt vmcnt(2)")
    A(wr2(88)); A(chk2(88))
    A(f"s_cbranch_scc0 L_go_{tag}")
    A(mld(88, sSLOTL))
    spin_guard(A)
    if prof: A(f"s_add_u32 s{S_TMO}, s{S_TMO}, 0xff")
    A("s_waitcnt vmcnt(2)")
    A(wr2(72)); A(chk2(72))
    A(f"s_cbranch_scc1 L_p2r_{tag}\ns_branch L_go_{tag}")
    if w == 1:
        A.label(f"L_prf_{tag}")
        A(f"""v_mov_b32 v73, 0
s_mov_b32 m0, {L_PRG}
s_mov_b64 exec, 1
buffer_load_dwordx4 v73, {W}, s{sFLG} offen sc1 lds
s_mov_b64 exec, -1
s_branch L_prfd_{tag}""")
    A.label(f"L_enter_{tag}")
    A(wr2(72))
    A(f"s_mov_b32 m0, s{sM0K}\ns_branch L_go_{tag}")
    A.label(f"L_kvw_{tag}")
    kv_wait(A, sT0, tag)
    A(f"s_branch L_kvd_{tag}")
    A.label(f"L_prg_{tag}")
    A(f"v_mov_b32 v92, {L_PRG}\nds_read_b128 v[92:95], v92\ns_waitcnt lgkmcnt(0)")
    prog_from(A, 92)
    A(f"s_branch L_prd_{tag}")

def end(A, prof=False):
    A.label("L_chain_end")
    istamp(A, 4, prof)
    tl(A, 5, vt=14)
    A(f"""s_waitcnt vmcnt(0)
s_barrier
s_cmp_lg_u32 s{S_W}, 0
s_cbranch_scc1 L_exit
v_mov_b32 v0, 64
v_mov_b32 v1, 32
s_mov_b64 exec, 1
buffer_store_dword v0, v1, {W}, s{sFLG} offen sc1
s_waitcnt vmcnt(0)
s_endpgm""")

def emit(A, test=False, prof=False, D1=0, D2=0, PTS=None, ends=False, **kw):
    init(A, test, prof or ends)
    for mode, sc in (("fast", ""), ("safe", "sc1")):
        for w in range(4): loop(A, mode, sc, w, prof, D1, D2, PTS, **kw)
    end(A, prof or ends)
```

```python
from asmlib import *

NAME = "parallel_sum__memory_aug_recurrent_mem_tr__mixer_token_mlp__prompt"
WS_XN   = 0x0000000
WS_H2T  = 0x0200000
WS_G    = 0x0400000
WS_YB   = 0x0600000
WS_INB  = 0x0900000
WS_RING = 0x0A00000
WS_FLAG = 0x08B0000
WS_PO   = 0x08B2000
WS_KVM  = 0x1000000
WS_KX   = 0x2000000
WS_VX   = 0x3000000
WS_QX   = 0x4000000
WS_OX   = 0x5000000
WS_PROF = 0x6000000
WS_SIZE = 0x10000000
DBG_CT = 0; DBG_CI = 4; DBG_XM = 8
DBG_WT = 128; DBG_LN = 132; DBG_B1 = 136; DBG_B2 = 140
P_X, P_MEM0, P_WQ, P_WK, P_WV, P_WO = 64, 66, 68, 70, 72, 74
P_W1, P_B1, P_W2, P_B2, P_OUT, P_DBG, P_WS = 80, 82, 84, 86, 88, 90, 92
S_WS = 4; S_DBG = 8
S_XCC = 3; S_W = 28; S_ROLE = 29; S_TMO = 100
TMO = 1 << 17

def spin_guard(A):
    A(f"s_add_u32 s{S_TMO}, s{S_TMO}, 1\ns_bitcmp1_b32 s{S_TMO}, 15\ns_cbranch_scc1 L_exit")


def srd(A, s, p, size):
    A(f"s_mov_b32 s{s}, s{p}\ns_mov_b32 s{s+1}, s{p+1}\ns_mov_b32 s{s+2}, {size:#x}\ns_mov_b32 s{s+3}, 0x20000")

def poll_dbg_ge(A, off, target, vt=2, st=30, sleep=2):
    lab = A.newlabel("L_pd")
    A(f"v_mov_b32 v{vt+1}, {off}")
    A.label(lab)
    A(f"""buffer_load_dword v{vt}, v{vt+1}, s[{S_DBG}:{S_DBG+3}], 0 offen sc1
s_waitcnt vmcnt(0)
v_readfirstlane_b32 s{st}, v{vt}
s_cmp_ge_u32 s{st}, {target}""")
    done = A.newlabel("L_pdd")
    A(f"s_cbranch_scc1 {done}\ns_sleep {sleep}")
    spin_guard(A)
    A(f"s_branch {lab}")
    A.label(done)

def dbg_add(A, off, val=1, vt=2, ret=False, op="add"):
    A(f"""v_mov_b32 v{vt}, {val}
v_mov_b32 v{vt+1}, {off}
s_mov_b64 exec, 1
buffer_atomic_{op} v{vt}, v{vt+1}, s[{S_DBG}:{S_DBG+3}], 0 offen {'sc0' if ret else ''}
s_mov_b64 exec, -1""")

TL = [False]
def tl(A, slot, vt=252, from_s=None):
    if not TL[0]: return
    if from_s is None: A("s_memrealtime s[96:97]")
    A(f"""s_lshl_b32 s97, s{S_ROLE}, 2
s_waitcnt lgkmcnt(0)
s_lshl_b32 s97, s{S_ROLE}, 2
s_add_u32 s97, s97, s{S_W}
s_lshl_b32 s97, s97, 6
s_add_u32 s97, s97, {WS_PROF + 0x200000 + slot*4:#x}
v_mov_b32 v{vt}, s{96 if from_s is None else from_s}
v_mov_b32 v{vt+1}, 0
s_mov_b64 exec, 1
buffer_store_dword v{vt}, v{vt+1}, s[{S_WS}:{S_WS+3}], s97 offen
s_mov_b64 exec, -1""")

def prologue(A, nwg=256):
    if TL[0]: A("s_memrealtime s[98:99]")
    A(f"""s_cmp_ge_u32 s2, {nwg}
s_cbranch_scc1 L_exit
s_load_dwordx16 s[64:79], s[0:1], 0
s_load_dwordx8 s[80:87], s[0:1], 64
s_load_dwordx4 s[88:91], s[0:1], 96
s_load_dwordx2 s[92:93], s[0:1], 112
s_mov_b32 s{S_TMO}, 0
s_getreg_b32 s{S_XCC}, hwreg(HW_REG_XCC_ID)
s_and_b32 s{S_XCC}, s{S_XCC}, 15
v_lshrrev_b32 v1, 6, v0
v_and_b32 v0, 63, v0
v_readfirstlane_b32 s{S_W}, v1
s_waitcnt lgkmcnt(0)""")
    srd(A, S_WS, P_WS, WS_SIZE)
    srd(A, S_DBG, P_DBG, 256)
    A(f"""s_cmp_lg_u32 s{S_W}, 0
s_cbranch_scc1 L_role_wait
s_cmp_lg_u32 s{S_XCC}, 0
s_cbranch_scc1 L_role_worker""")
    dbg_add(A, DBG_CT, ret=True)
    A(f"""s_waitcnt vmcnt(0)
v_readfirstlane_b32 s{S_ROLE}, v2
s_cmp_lt_u32 s{S_ROLE}, 32
s_cbranch_scc1 L_role_done""")
    A.label("L_role_worker")
    dbg_add(A, DBG_WT, ret=True)
    A(f"""s_waitcnt vmcnt(0)
v_readfirstlane_b32 s{S_ROLE}, v2
s_add_u32 s{S_ROLE}, s{S_ROLE}, 32
s_cmp_lt_u32 s{S_ROLE}, {nwg}
s_cbranch_scc1 L_role_done""")
    dbg_add(A, DBG_CT, ret=True)
    A(f"""s_waitcnt vmcnt(0)
v_readfirstlane_b32 s{S_ROLE}, v2""")
    A.label("L_role_done")
    A(f"""v_mov_b32 v2, s{S_ROLE}
v_mov_b32 v3, 0
ds_write_b32 v3, v2
s_waitcnt lgkmcnt(0)""")
    A.label("L_role_wait")
    A(f"""s_barrier
v_mov_b32 v3, 0
ds_read_b32 v2, v3
s_waitcnt lgkmcnt(0)
v_readfirstlane_b32 s{S_ROLE}, v2
s_barrier""")
    tl(A, 0, vt=4, from_s=98)
    tl(A, 1, vt=4)

HEADER = open("cdna_kernels/" + NAME + ".s.ref").read().split("; Override launch")[0]

def finish(A, path, kname=NAME + "_kernel"):
    body = pad_hazards(A.lines, verbose=True)
    txt = HEADER + "; @launch grid=(256,1,1) block=(256,1,1) lds=163840\n"
    txt += '.amdgcn_target "amdgcn-amd-amdhsa--gfx950"\n.text\n'
    txt += f".globl {kname}\n.p2align 8\n.type {kname},@function\n{kname}:\n"
    for ln in body:
        txt += (ln if ln.endswith(":") else "    " + ln) + "\n"
    txt += f""".section .rodata,"a"
.p2align 6
.amdhsa_kernel {kname}
  .amdhsa_next_free_vgpr 512
  .amdhsa_next_free_sgpr 102
  .amdhsa_accum_offset 256
  .amdhsa_group_segment_fixed_size 0
  .amdhsa_kernarg_size 120
  .amdhsa_user_sgpr_count 2
  .amdhsa_user_sgpr_kernarg_segment_ptr 1
  .amdhsa_system_sgpr_workgroup_id_x 1
  .amdhsa_float_denorm_mode_32 3
.end_amdhsa_kernel
"""
    open(path, "w").write(txt)
```

```python
from common import *
import math, struct
W = f"s[{S_WS}:{S_WS+3}]"
def f2u(x): return struct.unpack("<I", struct.pack("<f", x))[0]
sWI = 31
sLO, sHI_ = 32, 33
sMSK = 34
vLN = 255

def setup(A):
    A(f"""s_sub_u32 s{sWI}, s{S_ROLE}, 32
s_mov_b32 s{sLO}, 0x05040100
s_mov_b32 s{sHI_}, 0x07060302
s_mov_b32 s{sMSK}, 0xffff0000
v_mov_b32 v{vLN}, v0""")

def bf16r(A, dst, src, tmp=None):
    A(f"v_cvt_pk_bf16_f32 v{dst}, v{src}, v{src}\nv_and_b32 v{dst}, s{sMSK}, v{dst}")

def red32(A, v, t):
    for r in (1, 2, 4, 8):
        A(f"v_add_f32_dpp v{v}, v{v}, v{v} row_ror:{r} row_mask:0xf bank_mask:0xf")
    A(f"v_mov_b32 v{t}, v{v}\nv_permlane16_swap_b32 v{v}, v{t}\nv_add_f32 v{v}, v{v}, v{t}")

def ln16(A, x, y, t):
    A(f"v_add_f32 v{t}, v{x}, v{x+1}")
    for i in range(2, 16): A(f"v_add_f32 v{t}, v{t}, v{x+i}")
    red32(A, t, t+1)
    A(f"v_mul_f32 v{t}, {f2u(1/512):#x}, v{t}")
    for i in range(16): A(f"v_sub_f32 v{y+i}, v{x+i}, v{t}")
    A(f"v_mul_f32 v{t+2}, v{y}, v{y}")
    for i in range(1, 16): A(f"v_fmac_f32 v{t+2}, v{y+i}, v{y+i}")
    red32(A, t+2, t+1)
    A(f"v_mul_f32 v{t+2}, {f2u(1/512):#x}, v{t+2}")
    bf16r(A, t, t); bf16r(A, t+2, t+2)
    A(f"v_add_f32 v{t+2}, {f2u(1e-5):#x}, v{t+2}")
    bf16r(A, t+2, t+2)
    A(f"v_sqrt_f32 v{t+2}, v{t+2}")
    bf16r(A, t+2, t+2)
    A(f"v_rcp_f32 v{t+2}, v{t+2}")
    for i in range(16):
        A(f"v_sub_f32 v{y+i}, v{x+i}, v{t}")
        bf16r(A, y+i, y+i)
        A(f"v_mul_f32 v{y+i}, v{y+i}, v{t+2}")
        bf16r(A, y+i, y+i)

def ln_task(A, stask, hook=None, younger=0):
    ROW = 1040
    srd(A, 12, P_X, 0x200000)
    A(f"""v_lshrrev_b32 v1, 5, v{vLN}
s_lshl_b32 s36, s{S_W}, 1
v_add_u32 v1, s36, v1
v_and_b32 v2, 31, v{vLN}
v_lshlrev_b32 v3, 10, v1
v_lshl_add_u32 v3, v2, 5, v3
s_lshl_b32 s36, s{stask}, 13
buffer_load_dwordx4 v[4:7], v3, s[12:15], s36 offen
buffer_load_dwordx4 v[8:11], v3, s[12:15], s36 offen offset:16
v_mul_u32_u24 v3, {ROW}, v1
v_lshl_add_u32 v3, v2, 5, v3""")
    if hook: hook()
    A(f"s_waitcnt vmcnt({younger})")
    for i in range(8):
        A(f"v_lshlrev_b32 v{16+2*i}, 16, v{4+i}\nv_and_b32 v{17+2*i}, s{sMSK}, v{4+i}")
    ln16(A, 16, 32, 12)
    for i in range(8): A(f"v_perm_b32 v{4+i}, v{33+2*i}, v{32+2*i}, s{sHI_}")
    A("ds_write_b128 v3, v[4:7]\nds_write_b128 v3, v[8:11] offset:16")
    ln16(A, 32, 16, 12)
    for i in range(8): A(f"v_perm_b32 v{48+i}, v{17+2*i}, v{16+2*i}, s{sHI_}")
    A(f"ds_write_b128 v3, v[48:51] offset:{8*ROW}\nds_write_b128 v3, v[52:55] offset:{8*ROW+16}")
    A(f"""v_and_b32 v1, 7, v{vLN}
v_lshrrev_b32 v2, 3, v{vLN}
s_lshl_b32 s36, s{S_W}, 4
v_add_u32 v2, s36, v2
v_mul_u32_u24 v4, {ROW}, v1
v_lshl_add_u32 v4, v2, 4, v4
v_lshlrev_b32 v5, 8, v2
v_lshl_add_u32 v5, v1, 4, v5
v_bfe_u32 v1, v{vLN}, 2, 2
v_mul_u32_u24 v6, {ROW}, v1
v_and_b32 v1, 3, v{vLN}
v_lshl_add_u32 v6, v1, 3, v6
v_lshrrev_b32 v1, 4, v{vLN}
v_lshl_add_u32 v6, v1, 5, v6
s_lshl_b32 s36, s{S_W}, 8
v_add_u32 v6, s36, v6
v_lshlrev_b32 v7, 4, v{vLN}
s_lshr_b32 s36, s{stask}, 1
s_lshl_b32 s36, s36, 14
s_and_b32 s37, s{stask}, 1
s_lshl_b32 s37, s37, 7
s_add_u32 s36, s36, s37
s_add_u32 s36, s36, {WS_XN:#x}
s_lshl_b32 s37, s{stask}, 13
s_lshl_b32 s38, s{S_W}, 11
s_add_u32 s37, s37, s38
s_add_u32 s37, s37, {WS_H2T:#x}
s_waitcnt lgkmcnt(0)
s_barrier
ds_read_b128 v[8:11], v4
ds_read_b128 v[12:15], v4 offset:128
ds_read_b64_tr_b16 v[16:17], v6 offset:{8*ROW}
ds_read_b64_tr_b16 v[18:19], v6 offset:{12*ROW}
ds_read_b64_tr_b16 v[20:21], v6 offset:{8*ROW+128}
ds_read_b64_tr_b16 v[22:23], v6 offset:{12*ROW+128}
s_waitcnt lgkmcnt(4)
buffer_store_dwordx4 v[8:11], v5, {W}, s36 offen sc1
buffer_store_dwordx4 v[12:15], v5, {W}, s36 offen offset:2048 sc1
s_waitcnt lgkmcnt(0)
buffer_store_dwordx4 v[16:19], v7, {W}, s37 offen sc1
buffer_store_dwordx4 v[20:23], v7, {W}, s37 offen offset:1024 sc1""")

def arrive(A, off):
    lab = A.newlabel("L_arr")
    A(f"s_waitcnt vmcnt(0)\ns_barrier\ns_cmp_lg_u32 s{S_W}, 0\ns_cbranch_scc1 {lab}")
    dbg_add(A, off, vt=250)
    A.label(lab)

def wg_wait_dbg(A, off, target):
    lab = A.newlabel("L_wgw")
    A(f"s_cmp_lg_u32 s{S_W}, 0\ns_cbranch_scc1 {lab}")
    poll_dbg_ge(A, off, target, vt=250, st=30, sleep=4)
    A.label(lab)
    A("s_barrier")

def load_pairs(A, jobs, vaddr, depth, land, wait_extra=0):
    n = len(jobs)
    def issue(i):
        sb, sa, sbb, ia, ib, _, _ = jobs[i]; r = land + 2*(i % depth)
        A(f"s_mov_b32 s36, {sa:#x}\nbuffer_load_dword v{r}, v{vaddr}, s[{sb}:{sb+3}], s36 offen offset:{ia}")
        if sbb != sa: A(f"s_mov_b32 s37, {sbb:#x}")
        A(f"buffer_load_dword v{r+1}, v{vaddr}, s[{sb}:{sb+3}], s{37 if sbb != sa else 36} offen offset:{ib}")
    def retire(i):
        _, _, _, _, _, d0, d1 = jobs[i]; r = land + 2*(i % depth)
        for d, sel, t in ((d0, sLO, land-2), (d1, sHI_, land-1)):
            if d[0] == "v": A(f"v_perm_b32 v{d[1]}, v{r+1}, v{r}, s{sel}")
            else: A(f"v_perm_b32 v{t}, v{r+1}, v{r}, s{sel}\nv_accvgpr_write_b32 a{d[1]}, v{t}")
    return issue, retire, n

def qkv_weights_issue(A):
    A(f"""s_lshr_b32 s40, s{sWI}, 6          ; matrix 0 K, 1 V, 2 Q
s_bfe_u32 s41, s{sWI}, 0x50001       ; head
s_and_b32 s42, s{sWI}, 1             ; parity
s_cmp_eq_u32 s40, 0
s_cselect_b32 s16, s{P_WK}, s{P_WV}
s_cselect_b32 s17, s{P_WK+1}, s{P_WV+1}
s_cmp_eq_u32 s40, 2
s_cselect_b32 s16, s{P_WQ}, s16
s_cselect_b32 s17, s{P_WQ+1}, s17
s_mov_b32 s18, 0x400000
s_mov_b32 s19, 0x20000
v_lshrrev_b32 v60, 4, v{vLN}
v_lshlrev_b32 v60, 16, v60           ; 8g rows
v_and_b32 v61, 15, v{vLN}
v_lshl_add_u32 v60, v61, 2, v60
s_lshl_b32 s36, s41, 8
s_lshl_b32 s37, s{S_W}, 6
s_add_u32 s36, s36, s37
v_add_u32 v60, s36, v60""")
    jobs = []
    for ks in range(16):
        for q in range(4):
            row = 32*ks + 2*q
            jobs.append((16, row*8192, (row+1)*8192, 0, 0, ("a", (ks*2)*4 + q), ("a", (ks*2+1)*4 + q)))
    issue, retire, n = load_pairs(A, jobs, 60, 28, 64)
    for i in range(28): issue(i)
    def finish():
        for i in range(n):
            if i >= 28: A(f"s_waitcnt vmcnt({2*min(27, n-1-i)})")
            retire(i)
            if i + 28 < n: issue(i + 28)
    return finish

def qkv(A):
    A.comment("QKV projection: weights in a[0:127]")
    sSEG, sI, sXO, sOUT, sFL, sM0 = 43, 44, 45, 46, 47, 48
    A(f"""v_lshlrev_b32 v1, 4, v{vLN}
s_lshl_b32 s36, s{S_W}, 13
v_add_u32 v2, s36, v1
s_lshl_b32 s{sXO}, s42, 15
s_add_u32 s{sXO}, s{sXO}, {WS_XN:#x}
s_lshl_b32 s{sM0}, s{S_W}, 13
s_mov_b32 s36, {WS_VX:#x}
s_cmp_eq_u32 s40, 0
s_cselect_b32 s36, {WS_KX:#x}, s36
s_cmp_eq_u32 s40, 2
s_cselect_b32 s36, {WS_QX:#x}, s36
s_lshl_b32 s37, s42, 5
s_add_u32 s37, s37, s41
s_lshl_b32 s37, s37, 13
s_add_u32 s{sOUT}, s36, s37
s_cmp_eq_u32 s40, 1
s_cselect_b32 s36, 11, 10
s_lshl_b32 s36, s{S_W}, s36
s_add_u32 s{sOUT}, s{sOUT}, s36
s_lshl_b32 s36, s41, 7
s_lshl_b32 s37, s40, 3
s_add_u32 s36, s36, s37
s_lshl_b32 s37, s42, 2
s_add_u32 s36, s36, s37
s_add_u32 s{sFL}, s36, {WS_FLAG:#x}
s_mov_b32 s{sI}, 0
v_mov_b32 v3, 0""")
    def dma(slot_expr_sgpr):
        A(f"s_add_u32 m0, s{slot_expr_sgpr}, s{sM0}")
        for k in range(4): A(f"buffer_load_dwordx4 v2, {W}, s{sXO} offen offset:{k*1024} sc1 lds")
        A(f"s_add_u32 m0, m0, 4096\ns_add_u32 s36, s{sXO}, 4096")
        for k in range(4): A(f"buffer_load_dwordx4 v2, {W}, s36 offen offset:{k*1024} sc1 lds")
        A(f"s_add_u32 s{sXO}, s{sXO}, 0x10000")
    for k in range(3):
        A(f"s_mov_b32 s49, {k*32768}"); dma(49)
    for var in ("kq", "v"):
        if var == "kq": A("s_cmp_eq_u32 s40, 1\ns_cbranch_scc1 L_qkv_v")
        A.label(f"L_qkv_{var}")
        A(f"""s_waitcnt vmcnt(10)
s_barrier
s_and_b32 s49, s{sI}, 3
s_lshl_b32 s50, s49, 15
v_add_u32 v5, s50, v1
s_add_u32 s49, s49, 3
s_and_b32 s49, s49, 3
s_lshl_b32 s49, s49, 15""")
        for k in range(4): A(f"ds_read_b128 {vr(8+4*k,4)}, v5 offset:{(k&1)*16384 + (k>>1)*1024}")
        lf = A.newlabel("L_qf"); ld = A.newlabel("L_qd")
        A(f"""s_cmp_lg_u32 s{S_W}, 0
s_cbranch_scc1 {lf}
s_cmp_lt_u32 s{sI}, 2
s_cbranch_scc1 {lf}
s_sub_u32 s36, s{sI}, 1
v_mov_b32 v4, s36
s_mov_b64 exec, 1
buffer_store_dword v4, v3, {W}, s{sFL} offen sc1
s_mov_b64 exec, -1""")
        A.label(lf)
        dma(49)
        ACC = 40
        for ks in range(16):
            if ks + 2 < 16:
                for tt in range(2):
                    A(f"ds_read_b128 {vr(8 + ((ks+2) % 4)*8 + tt*4, 4)}, v5 offset:{tt*16384 + (ks+2)*1024}")
            A(f"s_waitcnt lgkmcnt({min(4, 2*(15-ks))})")
            for tt in range(2):
                for T in range(2):
                    d = vr(ACC + (tt*2+T)*4, 4); x = vr(8 + (ks % 4)*8 + tt*4, 4); wf = ar((ks*2+T)*4, 4)
                    c = "0" if ks == 0 else d
                    A(f"v_mfma_f32_16x16x32_bf16 {d}, {wf}, {x}, {c}" if var == "kq" else f"v_mfma_f32_16x16x32_bf16 {d}, {x}, {wf}, {c}")
        for o in range(2):
            t0, t1 = ((o*2, o*2+1) if var == "kq" else (o, 2+o))
            for k, t in enumerate((t0, t1)):
                A(f"v_cvt_pk_bf16_f32 v{56+o*4+2*k}, v{ACC+t*4}, v{ACC+t*4+1}\nv_cvt_pk_bf16_f32 v{56+o*4+2*k+1}, v{ACC+t*4+2}, v{ACC+t*4+3}")
        if var == "kq":
            A(f"s_add_u32 s36, s{sOUT}, 4096\nbuffer_store_dwordx4 v[56:59], v1, {W}, s{sOUT} offen sc1\nbuffer_store_dwordx4 v[60:63], v1, {W}, s36 offen sc1")
        else:
            A(f"buffer_store_dwordx4 v[56:59], v1, {W}, s{sOUT} offen sc1\nbuffer_store_dwordx4 v[60:63], v1, {W}, s{sOUT} offen offset:1024 sc1")
        A(f"""s_add_u32 s{sOUT}, s{sOUT}, 0x80000
s_add_u32 s{sI}, s{sI}, 1
s_cmp_lt_u32 s{sI}, 32
s_cbranch_scc1 L_qkv_{var}""")
        if var == "kq": A("s_branch L_qkv_end")
    A.label("L_qkv_end")
    lf = A.newlabel("L_qf")
    A(f"""s_waitcnt vmcnt(0)
s_barrier
s_cmp_lg_u32 s{S_W}, 0
s_cbranch_scc1 {lf}
v_mov_b32 v4, 32
s_mov_b64 exec, 1
buffer_store_dword v4, v3, {W}, s{sFL} offen sc1
s_mov_b64 exec, -1""")
    A.label(lf)

def gemm_b(A, which, stile):
    one = which == 1
    nks = 16 if one else 14
    rstride = 3584 if one else 4096
    nb = 28 if one else 32
    FB = WS_H2T if one else WS_G
    srd(A, 12, P_W1 if one else P_W2, 2048*3584 if one else 1792*4096)
    srd(A, 16, P_B1 if one else P_B2, 3584 if one else 4096)
    if one: A(f"s_mul_hi_u32 s41, s{stile}, {((1 << 32) + 27)//28:#x}\ns_mul_i32 s40, s41, 28\ns_sub_u32 s40, s{stile}, s40")
    else: A(f"s_lshr_b32 s41, s{stile}, 5\ns_and_b32 s40, s{stile}, 31")
    A(f"""v_and_b32 v1, 15, v{vLN}
v_lshrrev_b32 v2, 4, v{vLN}
v_mul_u32_u24 v3, {8*rstride}, v2
v_lshl_add_u32 v3, v1, 3, v3
s_mul_i32 s36, s{S_W}, {nks*32*rstride}
s_lshl_b32 s37, s40, 7
s_add_u32 s36, s36, s37
v_add_u32 v3, s36, v3
v_lshlrev_b32 v4, 13, v2""")
    if one: A("v_lshl_add_u32 v4, v1, 4, v4")
    else: A("v_lshrrev_b32 v5, 2, v1\nv_lshl_add_u32 v4, v5, 7, v4\nv_and_b32 v5, 3, v1\nv_lshl_add_u32 v4, v5, 4, v4")
    A(f"""s_mul_i32 s36, s{S_W}, {nks*4*8192}
s_lshl_b32 s37, s41, 11
s_add_u32 s36, s36, s37
s_add_u32 s36, s36, {FB:#x}
v_add_u32 v4, s36, v4""")
    if one: A("s_lshl_b32 s36, s40, 7\nv_lshlrev_b32 v5, 5, v2\nbuffer_load_dwordx4 v[8:11], v5, s[16:19], s36 offen\nbuffer_load_dwordx4 v[12:15], v5, s[16:19], s36 offen offset:16")
    else: A("s_lshl_b32 s36, s40, 7\nv_lshlrev_b32 v5, 3, v1\nbuffer_load_dwordx2 v[8:9], v5, s[16:19], s36 offen")
    NST = 3
    RAW = 16; FR = RAW + 16*NST; PF = FR + 32*NST
    def foff(t): return t*256 if one else (t >> 1)*512 + (t & 1)*64
    def issue(ks):
        st = ks % NST
        for r in range(8):
            A(f"s_mov_b32 s36, {(32*ks + r)*rstride:#x}\nbuffer_load_dwordx2 {vr(RAW + st*16 + 2*r, 2)}, v3, s[12:15], s36 offen")
        A(f"s_mov_b32 s36, {ks*32768:#x}")
        for t in range(8):
            A(f"buffer_load_dwordx4 {vr(FR + st*32 + 4*t, 4)}, v4, {W}, s36 offen offset:{foff(t)} sc1")
    for ks in range(NST): issue(ks)
    for ks in range(nks):
        st = ks % NST
        left = min(NST - 1, nks - 1 - ks)
        A(f"s_waitcnt vmcnt({16*left + 8})")
        for j in range(4):
            for q in range(4):
                A(f"v_perm_b32 v{PF + j*4 + q}, v{RAW + st*16 + 4*q + 2 + (j >> 1)}, v{RAW + st*16 + 4*q + (j >> 1)}, s{sHI_ if j & 1 else sLO}")
        for t in range(8):
            A(f"s_waitcnt vmcnt({16*left + 7 - t})")
            for j in range(4):
                d = ar((t*4 + j)*4, 4); c = "0" if ks == 0 else d
                a_, b_ = vr(PF + j*4, 4), vr(FR + st*32 + 4*t, 4)
                A(f"v_mfma_f32_16x16x32_bf16 {d}, {a_}, {b_}, {c}" if one else f"v_mfma_f32_16x16x32_bf16 {d}, {b_}, {a_}, {c}")
        if ks + NST < nks: issue(ks + NST)
    A(f"v_lshlrev_b32 v6, 4, v{vLN}\ns_nop 7")
    for w in range(4):
        lab = A.newlabel("L_gw")
        A(f"s_cmp_lg_u32 s{S_W}, {w}\ns_cbranch_scc1 {lab}")
        for dst in range(4):
            if dst == w:
                for k in range(32): A(f"v_accvgpr_read_b32 v{16+k}, a{dst*32 + k}")
            else:
                off = (dst*3 + ((w ^ dst) - 1))*8192
                A(f"v_add_u32 v7, {off}, v6")
                for k in range(8): A(f"ds_write_b128 v7, {ar(dst*32 + 4*k, 4)} offset:{k*1024}")
        A.label(lab)
    A(f"s_mul_i32 s36, s{S_W}, {3*8192}\nv_add_u32 v7, s36, v6\ns_waitcnt lgkmcnt(0)\ns_barrier")
    for s_ in range(3):
        for k in range(8): A(f"ds_read_b128 {vr(48 + s_*32 + 4*k, 4)}, v7 offset:{s_*8192 + k*1024}")
        if s_ > 0:
            A("s_waitcnt lgkmcnt(8)")
            for k in range(32): A(f"v_add_f32 v{16+k}, v{16+k}, v{48 + (s_-1)*32 + k}")
    A("s_waitcnt lgkmcnt(0)")
    for k in range(32): A(f"v_add_f32 v{16+k}, v{16+k}, v{48 + 64 + k}")
    if one:
        for i in range(8): A(f"v_lshlrev_b32 v{48+2*i}, 16, v{8+i}\nv_and_b32 v{49+2*i}, s{sMSK}, v{8+i}")
        c1 = -2*math.sqrt(2/math.pi)*math.log2(math.e)
        A(f"s_mov_b32 s36, {f2u(c1):#x}\ns_mov_b32 s37, {f2u(c1*0.044715):#x}\nv_mov_b32 v64, s36")
        for tl in range(2):
            for j in range(4):
                for r in range(4):
                    x = 16 + tl*16 + j*4 + r
                    bf16r(A, x, x)
                    A(f"v_add_f32 v{x}, v{x}, v{48 + 4*r + j}")
                    bf16r(A, x, x)
                    A(f"""v_mul_f32 v65, v{x}, v{x}
v_fma_f32 v65, v65, s37, v64
v_mul_f32 v65, v65, v{x}
v_exp_f32 v65, v65
v_add_f32 v65, 1.0, v65
v_rcp_f32 v65, v65
v_mul_f32 v{x}, v{x}, v65""")
        A(f"""v_lshlrev_b32 v5, 14, v2
v_lshl_add_u32 v5, v1, 4, v5
s_lshl_b32 s36, s40, 16
s_lshl_b32 s37, s41, 11
s_add_u32 s36, s36, s37
s_lshl_b32 s37, s{S_W}, 9
s_add_u32 s36, s36, s37
s_add_u32 s36, s36, {WS_G:#x}
s_add_u32 s37, s36, 8192""")
        for tl in range(2):
            for hh in range(2):
                for q in range(4):
                    e0 = 8*hh + 2*q; e1 = e0 + 1
                    A(f"v_cvt_pk_bf16_f32 v{68 + (tl*2+hh)*4 + q}, v{16 + tl*16 + (e0 & 3)*4 + (e0 >> 2)}, v{16 + tl*16 + (e1 & 3)*4 + (e1 >> 2)}")
                A(f"buffer_store_dwordx4 {vr(68 + (tl*2+hh)*4, 4)}, v5, {W}, s{36+hh} offen offset:{tl*256} sc1")
    else:
        A(f"v_lshlrev_b32 v48, 16, v8\nv_and_b32 v49, s{sMSK}, v8\nv_lshlrev_b32 v50, 16, v9\nv_and_b32 v51, s{sMSK}, v9")
        A(f"""v_lshlrev_b32 v5, 12, v1
v_lshl_add_u32 v5, v2, 4, v5
s_lshl_b32 s36, s40, 16
s_lshl_b32 s37, s41, 8
s_add_u32 s36, s36, s37
s_lshl_b32 s37, s{S_W}, 6
s_add_u32 s36, s36, s37
s_add_u32 s36, s36, {WS_YB:#x}""")
        for j in range(4):
            for tl in range(2):
                for r in range(4):
                    x = 16 + tl*16 + j*4 + r
                    bf16r(A, x, x)
                    A(f"v_add_f32 v{x}, v{x}, v{48+j}")
                for q in range(2):
                    x = 16 + tl*16 + j*4 + 2*q
                    A(f"v_cvt_pk_bf16_f32 v{68 + j*4 + tl*2 + q}, v{x}, v{x+1}")
            A(f"buffer_store_dwordx4 {vr(68 + j*4, 4)}, v5, {W}, s36 offen offset:{j*1024} sc1")
    arrive(A, DBG_B1 if one else DBG_B2)

def outproj(A):
    sP, sU, sPB = 40, 41, 42
    srd(A, 12, P_WO, 0x400000); srd(A, 16, P_X, 0x200000); srd(A, 20, P_OUT, 0x200000)
    A(f"""s_and_b32 s{sP}, s{sWI}, 15
s_lshr_b32 s{sU}, s{sWI}, 4
v_and_b32 v1, 15, v{vLN}
v_lshrrev_b32 v2, 4, v{vLN}
v_lshlrev_b32 v3, 13, v2            ; 8g rows
v_lshl_add_u32 v3, v1, 2, v3
s_lshl_b32 s36, s{S_W}, 20
s_lshl_b32 s37, s{sP}, 6
s_add_u32 s36, s36, s37
v_add_u32 v3, s36, v3""")
    jobs = []
    for kk in range(32):
        for q, (ra, rb) in enumerate(((0, 2), (4, 6), (1, 3), (5, 7))):
            base = (32*kk + (ra & 4))*1024
            jobs.append((12, base, base, (ra & 3)*1024, (rb & 3)*1024, ("a", (kk*2)*4 + q), ("a", (kk*2+1)*4 + q)))
    issue, retire, n = load_pairs(A, jobs, 3, 28, 64)
    for i in range(28): issue(i)
    for i in range(n):
        A(f"s_waitcnt vmcnt({2*min(27, n-1-i)})")
        retire(i)
        if i + 28 < n: issue(i + 28)
    tl(A, 10)
    wg_wait_dbg(A, DBG_B2, 128)
    tl(A, 11)
    A(f"""v_lshlrev_b32 v4, 4, v{vLN}
v_lshlrev_b32 v5, 2, v{vLN}
v_lshlrev_b32 v6, 10, v1
v_lshl_add_u32 v6, v2, 4, v6
s_lshl_b32 s36, s{sP}, 6
v_add_u32 v6, s36, v6               ; tok*1024 + P*64 + g*16
s_lshl_b32 s36, s{S_W}, 11
v_add_u32 v7, s36, v4
s_mov_b32 s{sPB}, 0""")
    A.label("L_op_loop")
    A(f"""s_lshr_b32 s43, s{sU}, 1          ; segment
s_and_b32 s36, s43, 3
s_lshl_b32 s36, s36, 7
s_add_u32 s44, s36, {WS_PO:#x}
s_lshr_b32 s43, s43, 2
s_lshl_b32 s45, s{sU}, 14""")
    lx = A.newlabel("L_opx")
    A(f"""s_cmp_lg_u32 s{S_W}, 0
s_cbranch_scc1 {lx}
s_add_u32 s36, s45, {WS_YB:#x}
buffer_load_dwordx4 v[8:11], v6, s[16:19], s45 offen
buffer_load_dwordx4 v[12:15], v6, {W}, s36 offen sc1""")
    A.label(lx)
    A.label("L_op_poll")
    A(f"""s_mov_b32 exec_hi, 0
buffer_load_dword v16, v5, {W}, s44 offen sc1
s_waitcnt vmcnt(0)
v_cmp_ge_u32 vcc, s43, v16
s_mov_b64 exec, -1
s_cbranch_vccz L_op_go
s_sleep 2""")
    spin_guard(A)
    A("s_branch L_op_poll")
    A.label("L_op_go")
    A(f"""s_mov_b32 s{S_TMO}, 0
s_lshl_b32 s36, s{sU}, 17
s_lshl_b32 s37, s{S_W}, 15
s_add_u32 s36, s36, s37
s_add_u32 s36, s36, {WS_OX:#x}""")
    for kk in range(32):
        if kk and kk % 4 == 0: A("s_add_u32 s36, s36, 4096")
        A(f"buffer_load_dwordx4 {vr(64 + 4*kk, 4)}, v4, {W}, s36 offen offset:{(kk % 4)*1024} sc1")
    for kk in range(32):
        A(f"s_waitcnt vmcnt({31-kk})")
        for T in range(2):
            d = vr(24 + 4*T, 4)
            A(f"v_mfma_f32_16x16x32_bf16 {d}, {ar((kk*2+T)*4, 4)}, {vr(64 + 4*kk, 4)}, {'0' if kk == 0 else d}")
    ly = A.newlabel("L_opy"); lz = A.newlabel("L_opz")
    A(f"""v_add_u32 v17, s{sPB}, v7
s_cmp_eq_u32 s{S_W}, 0
s_cbranch_scc1 {ly}
s_nop 4
ds_write_b128 v17, v[24:27]
ds_write_b128 v17, v[28:31] offset:1024
s_waitcnt lgkmcnt(0)
s_barrier
s_branch {lz}""")
    A.label(ly)
    A("s_barrier")
    for s_ in range(3):
        A(f"ds_read_b128 {vr(32 + 8*s_, 4)}, v17 offset:{(s_+1)*2048}\nds_read_b128 {vr(36 + 8*s_, 4)}, v17 offset:{(s_+1)*2048 + 1024}")
    for s_ in range(3):
        A(f"s_waitcnt lgkmcnt({4 - 2*s_})")
        for k in range(8): A(f"v_add_f32 v{24+k}, v{24+k}, v{32 + 8*s_ + k}")
    for r in range(4):
        for T in range(2):
            x = 24 + 4*T + r
            bf16r(A, x, x)
            A(f"v_lshlrev_b32 v18, 16, v{8+r}" if T == 0 else f"v_and_b32 v18, s{sMSK}, v{8+r}")
            A(f"v_add_f32 v{x}, v{x}, v18")
            bf16r(A, x, x)
            A(f"v_lshlrev_b32 v18, 16, v{12+r}" if T == 0 else f"v_and_b32 v18, s{sMSK}, v{12+r}")
            A(f"v_add_f32 v{x}, v{x}, v18")
        A(f"v_cvt_pk_bf16_f32 v{20+r}, v{24+r}, v{28+r}")
    A("buffer_store_dwordx4 v[20:23], v6, s[20:23], s45 offen")
    A.label(lz)
    A(f"""s_xor_b32 s{sPB}, s{sPB}, 8192
s_add_u32 s{sU}, s{sU}, 12
s_cmp_lt_u32 s{sU}, 128
s_cbranch_scc1 L_op_loop
s_waitcnt vmcnt(0)""")
    tl(A, 12)
    A("s_waitcnt vmcnt(0)\ns_endpgm")

def attention(A):
    sH, sSEG, sFL, sRDY, sPM, sSC, sHM = 40, 41, 42, 43, 44, 46, 48
    Q, K, V, KV, KF = 64, 96, 128, 160, 176
    A(f"""s_sub_u32 s{sH}, s{sWI}, 192
s_mov_b32 s{sSEG}, s{S_W}
s_lshl_b32 s36, s{sH}, 7
s_add_u32 s{sFL}, s36, {WS_FLAG:#x}
s_mov_b32 s{sRDY}, 0
s_mov_b32 s{sPM}, 0
s_mov_b32 s{sSC}, {f2u(math.log2(math.e)/math.sqrt(128.0)):#x}
s_mov_b32 s{sSC+1}, s{sSC}
s_mov_b32 s{sHM}, 0
s_mov_b32 s{sHM+1}, -1
v_and_b32 v1, 15, v{vLN}
v_lshrrev_b32 v2, 4, v{vLN}
v_lshlrev_b32 v3, 4, v{vLN}
v_lshrrev_b32 v6, 1, v2
v_lshlrev_b32 v6, 8, v6
v_lshl_add_u32 v6, v1, 4, v6
v_and_b32 v7, 1, v2
v_lshl_add_u32 v6, v7, 3, v6
s_lshl_b32 s36, s{S_W}, 11
v_add_u32 v4, s36, v6
v_lshrrev_b32 v6, 2, v1
v_lshl_add_u32 v6, v2, 2, v6
v_lshlrev_b32 v6, 4, v6
v_and_b32 v7, 1, v1
v_lshl_add_u32 v6, v7, 3, v6
v_add_u32 v5, s36, v6
v_lshlrev_b32 v6, 2, v2
v_mov_b32 v8, 0
v_mov_b32 v9, {f2u(-1e9*math.sqrt(128.0)):#x}
v_mov_b32 v56, 0x3f803f80
v_mov_b32 v57, 0x3f803f80
v_mov_b32 v58, 0x3f803f80
v_mov_b32 v59, 0x3f803f80
v_mov_b32 v61, 0
v_mov_b32 v62, 0""")
    for r in range(4): A(f"v_add_u32 v7, {r}, v6\nv_cmp_le_u32 s[{50+2*r}:{51+2*r}], v7, v1")
    A.label("L_at_loop")
    A(f"s_cmp_gt_u32 s{sRDY}, s{sSEG}\ns_cbranch_scc1 L_at_have")
    A.label("L_at_poll")
    A(f"""buffer_load_dwordx4 v[10:13], v8, {W}, s{sFL} offen sc1
buffer_load_dwordx2 v[14:15], v8, {W}, s{sFL} offen offset:16 sc1
s_waitcnt vmcnt(0)
v_min3_u32 v10, v10, v12, v14
v_min3_u32 v11, v11, v13, v15
v_lshlrev_b32 v10, 1, v10
v_lshl_or_b32 v11, v11, 1, 1
v_min_u32 v10, v10, v11
v_readfirstlane_b32 s{sRDY}, v10
s_cmp_gt_u32 s{sRDY}, s{sSEG}
s_cbranch_scc1 L_at_have
s_sleep 4""")
    spin_guard(A)
    A("s_branch L_at_poll")
    A.label("L_at_have")
    A(f"""s_lshl_b32 s36, s{sSEG}, 5
s_add_u32 s45, s36, s{sH}
s_lshl_b32 s36, s45, 13""")
    for base, reg in ((WS_QX, Q), (WS_KX, K), (WS_VX, V)):
        A(f"s_add_u32 s37, s36, {base:#x}\ns_add_u32 s38, s37, 4096")
        for k in range(8): A(f"buffer_load_dwordx4 {vr(reg + 4*k, 4)}, v3, {W}, s{37 + (k >> 2)} offen offset:{(k & 3)*1024} sc1")
    A("s_waitcnt vmcnt(8)")
    for j in range(4):
        for d, kt, qt in ((16, 0, 0), (20, 0, 1), (24, 1, 1)):
            A(f"v_mfma_f32_16x16x32_bf16 {vr(d,4)}, {vr(K + kt*16 + 4*j, 4)}, {vr(Q + qt*16 + 4*j, 4)}, {'0' if j == 0 else vr(d,4)}")
    A(f"s_cmp_gt_u32 s{sPM}, s{sSEG}\ns_cbranch_scc1 L_at_havem")
    A.label("L_at_pollm")
    A(f"""buffer_load_dword v10, v8, {W}, s{sFL} offen offset:32 sc1
s_waitcnt vmcnt(0)
v_readfirstlane_b32 s{sPM}, v10
s_cmp_gt_u32 s{sPM}, s{sSEG}
s_cbranch_scc1 L_at_havem
s_sleep 1""")
    spin_guard(A)
    A("s_branch L_at_pollm")
    A.label("L_at_havem")
    A(f"s_mov_b32 s{S_TMO}, 0\ns_lshl_b32 s36, s45, 12\ns_add_u32 s36, s36, {WS_KVM:#x}")
    for k in range(4): A(f"buffer_load_dwordx4 {vr(KV + 4*k, 4)}, v3, {W}, s36 offen offset:{k*1024} sc1")
    for r in range(4):
        A(f"v_cndmask_b32 v{16+r}, v9, v{16+r}, s[{50+2*r}:{51+2*r}]\nv_cndmask_b32 v{24+r}, v9, v{24+r}, s[{50+2*r}:{51+2*r}]")
    for k in range(4):
        A(f"s_waitcnt vmcnt({3-k})\nds_write_b64 v4, {vr(KV + 4*k, 2)} offset:{k*512}")
    A("s_waitcnt lgkmcnt(0)")
    for j in range(4):
        A(f"ds_read_b64_tr_b16 {vr(KF + 4*j, 2)}, v5 offset:{j*512}\nds_read_b64_tr_b16 {vr(KF + 4*j + 2, 2)}, v5 offset:{j*512 + 256}")
    for j in range(4):
        A(f"s_waitcnt lgkmcnt({6 - 2*j})")
        for d, qt in ((28, 0), (32, 1)):
            A(f"v_mfma_f32_16x16x32_bf16 {vr(d,4)}, {vr(KF + 4*j, 4)}, {vr(Q + qt*16 + 4*j, 4)}, {'0' if j == 0 else vr(d,4)}")
    A(f"""s_lshl_b32 s36, s{sSEG}, 6
s_add_u32 s36, s36, s{sH}
s_lshl_b32 s36, s36, 12
s_add_u32 s36, s36, {WS_OX:#x}""")
    for qt in range(2):
        m0 = 28 + 4*qt
        toks = [16, 17, 18, 19] if qt == 0 else list(range(20, 28))
        A(f"v_cndmask_b32 v{m0}, v{m0}, v{m0+2}, s[{sHM}:{sHM+1}]\nv_cndmask_b32 v{m0+1}, v{m0+1}, v{m0+3}, s[{sHM}:{sHM+1}]")
        A(f"v_max_f32 v36, v{m0}, v{m0+1}")
        for i in range(0, len(toks), 2): A(f"v_max3_f32 v36, v36, v{toks[i]}, v{toks[i+1]}")
        A("v_mov_b32 v37, v36\nv_permlane32_swap_b32 v36, v37\nv_max_f32 v36, v36, v37\nv_mov_b32 v37, v36\nv_permlane16_swap_b32 v36, v37\nv_max_f32 v36, v36, v37")
        A(f"v_mul_f32 v36, s{sSC}, v36")
        for b in toks[::2] + [m0]:
            A(f"v_pk_fma_f32 {vr(b,2)}, {vr(b,2)}, s[{sSC}:{sSC+1}], v[36:37] op_sel_hi:[1,1,0] neg_lo:[0,0,1] neg_hi:[0,0,1]")
        for b in toks + [m0, m0+1]: A(f"v_exp_f32 v{b}, v{b}")
        for i in range(4):
            if 2*i < len(toks): A(f"v_cvt_pk_bf16_f32 v{40+i}, v{toks[2*i]}, v{toks[2*i+1]}")
            else: A(f"v_mov_b32 v{40+i}, 0")
        A(f"v_cvt_pk_bf16_f32 v60, v{m0}, v{m0+1}\nv_cvt_pk_bf16_f32 v63, v{m0}, v{m0+1}")
        A("v_mfma_f32_16x16x32_bf16 v[44:47], v[56:59], v[40:43], 0")
        OB = 192
        for et in range(8):
            A(f"v_mfma_f32_16x16x32_bf16 {vr(OB + 4*et, 4)}, {vr(V + 4*et, 4)}, v[40:43], 0")
        A("v_mfma_f32_16x16x16_bf16 v[44:47], v[56:57], v[60:61], v[44:47]")
        for et in range(8):
            A(f"v_mfma_f32_16x16x16_bf16 {vr(OB + 4*et, 4)}, {vr(KV + 4*(et >> 1) + 2, 2)}, {vr(60 + 2*(et & 1), 2)}, {vr(OB + 4*et, 4)}")
        A("v_rcp_f32 v44, v44")
        for j in range(4):
            for i in range(0, 8, 2): A(f"v_pk_mul_f32 {vr(OB + 8*j + i, 2)}, {vr(OB + 8*j + i, 2)}, v[44:45] op_sel_hi:[1,0]")
            for i in range(4): A(f"v_cvt_pk_bf16_f32 v{224 + 4*j + i}, v{OB + 8*j + 2*i}, v{OB + 8*j + 2*i + 1}")
            A(f"buffer_store_dwordx4 {vr(224 + 4*j, 4)}, v3, {W}, s36 offen offset:{j*1024} sc1")
        if qt == 0: A("s_add_u32 s36, s36, 0x20000")
    A(f"""s_lshr_b32 s36, s{sSEG}, 2
s_add_u32 s36, s36, 1
v_mov_b32 v10, s36
s_lshl_b32 s36, s{S_W}, 7
s_lshl_b32 s37, s{sH}, 2
s_add_u32 s36, s36, s37
s_add_u32 s36, s36, {WS_PO:#x}
s_waitcnt vmcnt(0)
s_mov_b64 exec, 1
buffer_store_dword v10, v8, {W}, s36 offen sc1
s_mov_b64 exec, -1
s_add_u32 s{sSEG}, s{sSEG}, 4
s_cmp_lt_u32 s{sSEG}, 64
s_cbranch_scc1 L_at_loop
s_waitcnt vmcnt(0)""")
    tl(A, 12)
    A("s_waitcnt vmcnt(0)\ns_endpgm")

def emit(A):
    A.label("L_worker")
    setup(A)
    A(f"s_cmp_ge_u32 s{sWI}, 192\ns_cbranch_scc1 L_att_wg")
    fin = []
    ln_task(A, sWI, hook=lambda: fin.append(qkv_weights_issue(A)), younger=56)
    arrive(A, DBG_LN)
    tl(A, 2)
    fin[0]()
    tl(A, 3)
    wg_wait_dbg(A, DBG_CI, 32)
    wg_wait_dbg(A, DBG_LN, 256)
    tl(A, 4)
    qkv(A)
    tl(A, 5)
    A(f"s_cmp_ge_u32 s{sWI}, 80\ns_cbranch_scc1 L_no_b1\ns_add_u32 s39, s{sWI}, 32\ns_barrier\ns_branch L_b1")
    A.label("L_att_wg")
    ln_task(A, sWI)
    A(f"s_waitcnt lgkmcnt(0)\ns_barrier\ns_add_u32 s39, s{sWI}, 32")
    ln_task(A, 39)
    lab = A.newlabel("L_arr")
    A(f"s_waitcnt vmcnt(0)\ns_barrier\ns_cmp_lg_u32 s{S_W}, 0\ns_cbranch_scc1 {lab}")
    dbg_add(A, DBG_LN, val=2, vt=250)
    A.label(lab)
    wg_wait_dbg(A, DBG_CI, 32)
    wg_wait_dbg(A, DBG_LN, 256)
    A(f"s_sub_u32 s39, s{sWI}, 192")
    A.label("L_b1")
    tl(A, 6)
    gemm_b(A, 1, 39)
    tl(A, 7)
    A(f"s_cmp_ge_u32 s{sWI}, 192\ns_cbranch_scc1 L_att")
    A.label("L_no_b1")
    A(f"s_cmp_lt_u32 s{sWI}, 64\ns_cbranch_scc1 L_no_b2\ns_sub_u32 s39, s{sWI}, 64")
    wg_wait_dbg(A, DBG_B1, 112)
    tl(A, 8)
    gemm_b(A, 2, 39)
    tl(A, 9)
    A.label("L_no_b2")
    outproj(A)
    A.label("L_att")
    attention(A)
```

```python
from common import *
import math, struct

L_WO = 0; L_MEM = 131072; L_STG = L_MEM + 8192; L_QIM = L_STG + 16384; L_KIM = L_QIM + 2048
L_SEL = L_KIM + 2048; L_PRG = L_SEL + 1024
MF, KX, QF, KF, VX = 0, 32, 64, 80, 96
vM, vMR, vWO, vIDX, vH1, vH2, vQW, vQR = 104, 105, 106, 107, 108, 109, 110, 111
vMW, vQA, vOA, vRD = 56, 57, 58, 59
TA = 112; PUB = 120; P0A = 124; P0B = 126
WV = 128
WK, WQ = 0, 128
sSTEP, sPAR, sRD0, sRD1, sSLOT, sSLOTL, sKX, sVX, sPUB, sPROG, sM0K, sM0V, sT0, sT1, sRING_R = 31, 32, 33, 36, 37, 38, 39, 40, 41, 42, 43, 44, 45, 46, 47
sSC = 34
sHI = 48
sTAG = 101
sQM = 94; sMK = 16
sRDB = 47; sONE = 98
sFLG = 50
sPRF = 52
W = f"s[{S_WS}:{S_WS+3}]"


def kv_wait(A, need_sgpr_expr_reg, tag):
    lab = A.newlabel("L_kvw"); done = A.newlabel("L_kvd")
    A(f"s_cmp_ge_u32 s{sPROG}, s{need_sgpr_expr_reg}\ns_cbranch_scc1 {done}")
    A.label(lab)
    A(f"""v_mov_b32 v76, 0
buffer_load_dwordx4 v[72:75], v76, {W}, s{sFLG} offen sc1
s_waitcnt vmcnt(0)""")
    prog_from(A, 72)
    A(f"s_cmp_ge_u32 s{sPROG}, s{need_sgpr_expr_reg}\ns_cbranch_scc1 {done}\ns_sleep 1")
    spin_guard(A)
    A(f"s_branch {lab}")
    A.label(done)

def prog_from(A, b):
    _prog_from(A, b)
    A(f"s_max_u32 s{sPROG}, s{sPROG}, s30")

def _prog_from(A, b):
    A(f"""v_min_u32 v{b}, v{b}, v{b+2}
v_min_u32 v{b+1}, v{b+1}, v{b+3}
v_lshlrev_b32 v{b}, 1, v{b}
v_lshl_or_b32 v{b+1}, v{b+1}, 1, 1
v_min_u32 v{b}, v{b}, v{b+1}
v_readfirstlane_b32 s30, v{b}""")

def dma_kv(A):
    A(f"""s_mov_b32 m0, s{sM0K}
s_nop 0
buffer_load_dwordx4 v{vM}, {W}, s{sKX} offen sc1 lds
buffer_load_dwordx4 v{vM}, {W}, s{sKX} offen offset:1024 sc1 lds
s_mov_b32 m0, s{sM0V}
s_nop 0
buffer_load_dwordx4 v{vM}, {W}, s{sVX} offen sc1 lds
buffer_load_dwordx4 v{vM}, {W}, s{sVX} offen offset:1024 sc1 lds
s_add_u32 s{sKX}, s{sKX}, 0x40000
s_add_u32 s{sVX}, s{sVX}, 0x40000""")

def stage_reads(A, w=None):
    for i in range(2):
        if w is None: A(f"ds_read_b128 {vr(VX+4*i,4)}, v{vMW} offset:{L_STG-L_MEM+8192+i*1024}")
        else: A(f"ds_read_b128 {vr(VX+4*i,4)}, v{vM} offset:{L_STG-L_MEM+8192+w*2048+i*1024}")
    for i in range(8):
        A(f"ds_read_b128 {vr(KX+4*i,4)}, v{vM} offset:{L_STG-L_MEM+i*1024}")

def zero_accs(A):
    for b in (80, 64, TA):
        for i in range(0, 8, 2): A(f"v_mov_b64 {vr(b+i,2)}, 0")

def istamp(A, i, prof, b=14):
    if not prof: return
    A(f"""s_memtime s[52:53]
s_memrealtime s[54:55]
s_lshl_b32 s56, s{S_ROLE}, 2
s_add_u32 s56, s56, s{S_W}
s_lshl_b32 s56, s56, 7
s_add_u32 s56, s56, {WS_PROF + 0x100000 + i*8:#x}
s_waitcnt lgkmcnt(0)
v_mov_b32 v14, s52
v_mov_b32 v15, s54
v_mov_b32 v9, 0
s_mov_b64 exec, 1
buffer_store_dwordx2 v[14:15], v9, {W}, s56 offen
s_mov_b64 exec, -1""")

def SEL0(A):
    A(f"""v_lshrrev_b32 v4, 2, v2      ; g'
v_and_b32 v5, 3, v2           ; r
v_and_b32 v6, 1, v4
v_lshlrev_b32 v6, 4, v6
v_mov_b32 v7, 0x3f80
v_lshlrev_b32 v7, v6, v7      ; value
v_lshrrev_b32 v4, 1, v4
v_lshl_add_u32 v4, v5, 1, v4""")
    for q in range(4):
        A(f"v_cmp_eq_u32 vcc, {q}, v4\nv_cndmask_b32 v{80+q}, 0, v7, vcc")
    A(f"ds_write_b128 v{vM}, v[80:83] offset:{L_SEL - L_MEM}")
    A(f"s_mov_b32 s{sT0}, 2")
    A(f"v_mov_b32 v12, 0\nv_lshlrev_b32 v13, 2, v0\nv_add_u32 v13, {L_PRG}, v13\nds_write_b32 v13, v12")
    kv_wait(A, sT0, "i")
    dma_kv(A)

def init(A, test=False, prof=False, NB=12):
    h, w = S_ROLE, S_W
    istamp(A, 0, prof)
    srd(A, 12, P_WQ, 0x400000); srd(A, 16, P_WK, 0x400000); srd(A, 20, P_WV, 0x400000); srd(A, 24, P_MEM0, 8192)
    A(f"""v_and_b32 v2, 15, v0          ; n
v_lshrrev_b32 v3, 4, v0       ; g
v_and_b32 v14, 7, v0
v_lshlrev_b32 v14, 10, v14
v_lshrrev_b32 v15, 1, v3
v_lshl_add_u32 v14, v15, 6, v14
v_and_b32 v15, 1, v3
v_lshl_add_u32 v14, v15, 3, v14
s_lshl_b32 s{sT0}, s{w}, 8
v_lshrrev_b32 v12, 5, v0
v_bfe_u32 v13, v0, 4, 1
v_lshl_add_u32 v12, v13, 1, v12
v_bfe_u32 v13, v0, 3, 1
v_lshl_add_u32 v12, v13, 2, v12
v_bfe_u32 v13, v0, 2, 1
v_lshl_add_u32 v12, v13, 4, v12
v_lshlrev_b32 v12, 13, v12
v_and_b32 v13, 3, v0
v_lshl_add_u32 v12, v13, 4, v12
s_lshl_b32 s{sT1}, s{h}, 8
s_lshl_b32 s30, s{w}, 6
s_add_u32 s{sT1}, s{sT1}, s30
v_add_u32 v{vQA}, s{sT1}, v12
s_lshl_b32 s55, s{w}, 15""")
    for k in range(8):
        A(f"buffer_load_dwordx2 {vr(88+2*k,2)}, v14, s[24:27], s{sT0} offen offset:{(k>>2)*128 + (k&3)*16}")
    srd(A, 24, P_WO, 0x400000)
    def dma(i):
        A(f"s_add_u32 m0, s55, {(i % 32)*1024}")
        if i < 96:
            mt, t, k = i >> 5, (i >> 2) & 7, i & 3
            A(f"s_mov_b32 s{sT0}, {(64*t + 32*(k >> 1) + 8*(k & 1))*8192:#x}")
            A(f"buffer_load_dwordx4 v{vQA}, s[{12+4*mt}:{15+4*mt}], s{sT0} offen lds")
        else:
            fp, jp = (i >> 3) & 3, i & 7
            A(f"s_xor_b32 s{sT0}, s{w}, {fp}\ns_lshl_b32 s{sT0}, s{sT0}, 15\ns_add_u32 s{sT0}, s{sT0}, {(16*(jp >> 2) + 2*(jp & 3))*1024}")
            A(f"buffer_load_dwordx4 v{vOA}, s[24:27], s{sT0} offen lds")
    for i in range(NB): dma(i)
    A(f"""v_lshlrev_b32 v1, 4, v0
v_add_u32 v{vM}, {L_MEM}, v1
s_lshl_b32 s{sT0}, s{w}, 11
v_add_u32 v{vMW}, s{sT0}, v{vM}
s_lshl_b32 s{sT0}, s{w}, 15
v_add_u32 v{vWO}, s{sT0}, v1
v_mov_b32 v12, 0x88884444
v_mov_b32 v13, 0xddddeeee
v_cmp_gt_u32 vcc, 8, v2
v_cndmask_b32 v{vIDX}, v13, v12, vcc
v_lshrrev_b32 v12, 2, v2
v_lshlrev_b32 v12, 1, v12
s_lshl_b32 s{sT0}, s{w}, 3
v_add_u32 v12, s{sT0}, v12
v_add_u32 v13, s{h}, v12
v_and_b32 v13, 31, v13
v_lshlrev_b32 v13, 6, v13
v_lshl_add_u32 v13, v12, 13, v13
v_and_b32 v12, 3, v2
v_lshl_add_u32 v13, v12, 4, v13
v_lshl_add_u32 v{vH1}, v3, 11, v13
; vH2 = h*256 + w*64 + g*16 + (n&3)*4
v_lshlrev_b32 v13, 2, v12
v_lshl_add_u32 v13, v3, 4, v13
s_lshl_b32 s{sT0}, s{h}, 8
s_lshl_b32 s{sT1}, s{w}, 6
s_add_u32 s{sT0}, s{sT0}, s{sT1}
v_add_u32 v{vH2}, s{sT0}, v13
v_lshrrev_b32 v12, 1, v3
v_lshlrev_b32 v13, 8, v12
v_lshl_add_u32 v13, v2, 4, v13
v_and_b32 v12, 1, v3
v_lshl_add_u32 v13, v12, 3, v13
s_lshl_b32 s{sT0}, s{w}, 9
s_add_u32 s{sT0}, s{sT0}, {L_QIM}
v_add_u32 v{vQW}, s{sT0}, v13
v_lshrrev_b32 v12, 2, v2
v_lshl_add_u32 v12, v3, 2, v12
v_lshlrev_b32 v12, 4, v12
v_and_b32 v13, 1, v2
v_lshl_add_u32 v12, v13, 3, v12
v_add_u32 v{vQR}, {L_QIM}, v12
v_mov_b32 v{P0A+1}, 0
v_mov_b32 v{P0B}, 0
; scalars
s_mov_b32 s{sSC}, {f2u(math.log2(math.e)/math.sqrt(128.0)):#x}
s_mov_b32 s{sSC+1}, s{sSC}
s_mov_b32 s{sHI}, 0
s_mov_b32 s{sHI+1}, -1
s_mov_b32 s{sSTEP}, 0
s_mov_b32 s{sPAR}, {WS_INB:#x}
s_lshl_b32 s{sT0}, s{h}, 13
s_add_u32 s{sRDB}, s{sT0}, {WS_INB - L_MEM:#x}
s_mov_b32 s{sONE}, 0x3f803f80
s_mov_b32 s{sONE+1}, 0x3f803f80
s_lshl_b32 s{sT1}, s{w}, 11
s_add_u32 s{sT0}, s{sT0}, s{sT1}
s_add_u32 s{sKX}, s{sT0}, {WS_KX - L_MEM:#x}
s_add_u32 s{sVX}, s{sT0}, {WS_VX - L_MEM:#x}
s_lshl_b32 s{sT0}, s{h}, 12
s_lshl_b32 s{sT1}, s{w}, 10
s_add_u32 s{sT0}, s{sT0}, s{sT1}
s_add_u32 s{sPUB}, s{sT0}, {WS_KVM - L_MEM:#x}
s_lshl_b32 s{sT0}, s{w}, 11
s_add_u32 s{sM0K}, s{sT0}, {L_STG}
s_add_u32 s{sM0V}, s{sT0}, {L_STG + 8192}
s_lshl_b32 s{sT0}, s{h}, 7
s_add_u32 s{sFLG}, s{sT0}, {WS_FLAG:#x}
s_mov_b32 s{sPROG}, {64 if test else 0}
v_mov_b32 v12, 0
v_mov_b32 v13, 0
v_mov_b32 v14, 0
v_mov_b32 v15, 0
s_mov_b32 s{sTAG}, 1
s_add_u32 s{sT0}, s{sRDB}, 0x40000
s_add_u32 s{sT1}, s{sRDB}, 0x80000
s_add_u32 s30, s{sRDB}, 0xc0000
buffer_store_dwordx4 v[12:15], v{vMW}, {W}, s{sRDB} offen sc1
buffer_store_dwordx4 v[12:15], v{vMW}, {W}, s{sRDB} offen offset:1024 sc1
buffer_store_dwordx4 v[12:15], v{vMW}, {W}, s{sT0} offen sc1
buffer_store_dwordx4 v[12:15], v{vMW}, {W}, s{sT0} offen offset:1024 sc1
buffer_store_dwordx4 v[12:15], v{vMW}, {W}, s{sT1} offen sc1
buffer_store_dwordx4 v[12:15], v{vMW}, {W}, s{sT1} offen offset:1024 sc1
buffer_store_dwordx4 v[12:15], v{vMW}, {W}, s30 offen sc1
buffer_store_dwordx4 v[12:15], v{vMW}, {W}, s30 offen offset:1024 sc1
v_mov_b32 v16, -1
s_mov_b32 s{sQM}, 0x000f000f
s_mov_b32 s{sQM+1}, 0x000f000f
s_mov_b64 exec, s[{sQM}:{sQM+1}]
s_mov_b32 s{sT0}, {WS_RING:#x}
s_mov_b32 s{sT1}, {WS_RING+16384:#x}
buffer_store_dword v16, v{vH2}, {W}, s{sT0} offen sc1
buffer_store_dword v16, v{vH2}, {W}, s{sT1} offen sc1
s_mov_b32 s{sT0}, {WS_RING+8192:#x}
s_mov_b32 s{sT1}, {WS_RING+24576:#x}
buffer_store_dword v16, v{vH2}, {W}, s{sT0} offen sc1
buffer_store_dword v16, v{vH2}, {W}, s{sT1} offen sc1
s_mov_b64 exec, -1
v_lshlrev_b32 v17, 2, v0
s_lshl_b32 s{sT0}, s{w}, 5
s_add_u32 s{sT0}, s{sT0}, s{sFLG}
s_lshl_b32 s{sT1}, s{w}, 7
s_lshl_b32 s30, s{h}, 2
s_add_u32 s{sT1}, s{sT1}, s30
s_add_u32 s{sT1}, s{sT1}, {WS_PO:#x}
s_mov_b64 exec, 0xff
buffer_store_dword v12, v17, {W}, s{sT0} offen sc1
s_mov_b64 exec, 1
buffer_store_dword v12, v17, {W}, s{sT1} offen sc1
s_mov_b64 exec, -1
""")
    A(f"""; Wo lane part: (h*128 + 8*(g>>1) + (g&1))*1024 + w*256 + n*16
v_lshrrev_b32 v18, 1, v3
v_lshlrev_b32 v18, 3, v18
v_and_b32 v19, 1, v3
v_add_u32 v18, v18, v19
v_lshlrev_b32 v18, 10, v18
v_lshl_add_u32 v18, v2, 4, v18
s_lshl_b32 s{sT0}, s{h}, 17
s_lshl_b32 s{sT1}, s{w}, 8
s_add_u32 s{sT0}, s{sT0}, s{sT1}
v_add_u32 v{vOA}, s{sT0}, v18
v_lshlrev_b32 v18, 2, v0
v_add_u32 v{vRD}, s55, v18""")
    NST = 14
    if not test:
        ln_task(A)
        NST += 4
    for i in range(NB, 32): dma(i)
    A("v_and_b32 v2, 15, v0\nv_lshrrev_b32 v3, 4, v0")
    for i in range(96):
        A(f"s_waitcnt vmcnt({31 + NST if i < NB else 31})")
        if i == NB:
            lab = A.newlabel("L_ci")
            A(f"""s_barrier
s_cmp_lg_u32 s{w}, 0
s_cbranch_scc1 {lab}
s_cmp_lg_u32 s{S_XCC}, 0
s_cselect_b32 s56, 0x10001, 1""")
            dbg_add(A, DBG_CI, val="s56", vt=20)
            A.label(lab)
        mt, t, k = i >> 5, (i >> 2) & 7, i & 3
        A(f"ds_read2st64_b32 v[12:13], v{vRD} offset0:{(i % 32)*4} offset1:{(i % 32)*4+1}")
        A(f"ds_read2st64_b32 v[14:15], v{vRD} offset0:{(i % 32)*4+2} offset1:{(i % 32)*4+3}")
        A("s_waitcnt lgkmcnt(0)")
        dma(i + 32)
        for jl in range(2):
            base = (WQ, WK, WV)[mt]
            d0 = base + (t*2)*8 + 2*k + jl; d1 = d0 + 8
            if mt == 2:
                A(f"v_perm_b32 v{d0}, v{13+2*jl}, v{12+2*jl}, s{sLO}\nv_perm_b32 v{d1}, v{13+2*jl}, v{12+2*jl}, s{sHI_}")
            else:
                A(f"v_perm_b32 v16, v{13+2*jl}, v{12+2*jl}, s{sLO}\nv_perm_b32 v17, v{13+2*jl}, v{12+2*jl}, s{sHI_}\nv_accvgpr_write_b32 a{d0}, v16\nv_accvgpr_write_b32 a{d1}, v17")
    istamp(A, 1, prof)
    tl(A, 2, vt=14)
    ex = (1 if prof else 0) + (1 if TL[0] else 0)
    for fp in range(4):
        A(f"s_waitcnt vmcnt({(24 - 8*fp + ex) if fp < 3 else 0})")
        if fp == 3:
            SEL0(A)
        for jp in range(8): A(f"ds_read_b128 {vr(16 + 4*jp, 4)}, v{vWO} offset:{(fp*8 + jp)*1024}")
        A("s_waitcnt lgkmcnt(0)")
        for P in range(4):
            for half in range(2):
                b = 60 + ((P*2+half) % 4)*4
                for q in range(4): A(f"v_mov_b32 v{b+q}, v{16 + (half*4+q)*4 + P}")
                A(f"ds_write_b128 v{vWO}, {vr(b,4)} offset:{(fp*4+P)*2048 + half*1024}")
                if (P*2+half) % 4 == 3: A("s_waitcnt lgkmcnt(0)")
    istamp(A, 2, prof)
    tl(A, 3, vt=14)
    A(f"""v_mov_b32 v6, s{sLO}
v_mov_b32 v7, s{sHI_}
v_cmp_gt_u32 vcc, 8, v2
v_cndmask_b32 v6, v7, v6, vcc""")
    for k in range(8):
        A(f"v_perm_b32 v{16+k}, v{89+2*k}, v{88+2*k}, v6\nv_min_u32 v{16+k}, -2, v{16+k}")
    poll_dbg_ge(A, DBG_CI - (DBG_DONE if test else 0), 32, vt=72, low16=True)
    A(f"""s_lshr_b32 s51, s30, 16
s_waitcnt vmcnt(0) lgkmcnt(0)
s_barrier""")
    stage_reads(A)
    zero_accs(A)
    for k in range(8): A(f"v_mov_b32 v{72+k}, v{16+k}")
    A(f"s_lshl_b32 s{sT0}, s{w}, 11\ns_add_u32 s{sRDB}, s{sRDB}, s{sT0}")
    istamp(A, 3, prof)
    tl(A, 4, vt=14)
    A(f"s_waitcnt lgkmcnt(0)\ns_cmp_eq_u32 s51, 0\ns_cbranch_scc0 L_go_safe")
    for mode in ("fast", "safe"):
        A.label(f"L_go_{mode}")
        for k in range(3): A(f"s_cmp_eq_u32 s{w}, {k}\ns_cbranch_scc1 L_enter_{mode}{k}")
        A(f"s_branch L_enter_{mode}3")

def interleave(A, main, fill, per=1, start=0, every=1):
    fill = list(fill)
    for i, m in enumerate(main):
        A(m)
        if i >= start and (i - start) % every == 0:
            for _ in range(per):
                if fill: A(fill.pop(0))
    return fill

def loop(A, mode, sc, w, prof=False, D1=0, D2=0, PTS=None, RT=False, PUBAT='max', E1=64, E2=128, SMV=0, F1=160, NEX=2):
    tag = f"{mode}{w}"
    pts = PTS if PTS else ["enter", "kend", "send", "oex", "h1", "p1", "h2"]
    def mark(name):
        A.lines.append(f"; MARK {name}")
        if prof and name in pts:
            i = pts.index(name)
            r = (sPRF + 2*i) if i < 4 else (96 if i == 6 else 62 if i == 5 else 12)
            A(f"s_mem{'real' if RT else ''}time s[{r}:{r+1}]")
    def delay(n):
        while n > 0:
            k = min(16, (n+3)//4); A(f"s_nop {k-1}"); n -= 4*k
    A(".p2align 6")
    A.label(f"L_loop_{tag}")
    A(f"""s_add_u32 s{sT1}, s{sSTEP}, 2
s_and_b32 s{sT1}, s{sT1}, 3
s_lshl_b32 s{sT1}, s{sT1}, 13
s_add_u32 s{sT1}, s{sT1}, {WS_RING:#x}
s_mov_b64 exec, s[{sQM}:{sQM+1}]
buffer_store_dword v30, v{vH2}, {W}, s{sT1} offen {sc}
s_mov_b64 exec, -1
s_mov_b32 m0, s{sM0K}""")
    delay(D2)
    def ld2(b): return f"""buffer_load_dwordx4 {vr(b,4)}, v{vM}, {W}, s{sSLOTL} offen sc1
buffer_load_dwordx4 {vr(b+4,4)}, v{vM}, {W}, s{sSLOTL} offen offset:1024 sc1"""
    def chk2(b): return f"""v_max3_u32 v26, v{b}, v{b+1}, v{b+2}
v_max3_u32 v27, v{b+4}, v{b+5}, v{b+6}
v_max_u32 v26, v26, v{b+3}
v_max_u32 v27, v27, v{b+7}
v_cmp_eq_u32 vcc, -1, v26
v_cmp_eq_u32 s[{sMK}:{sMK+1}], -1, v27
s_or_b64 s[{sMK+2}:{sMK+3}], vcc, s[{sMK}:{sMK+1}]"""
    def wr2(b): return f"""ds_write_b128 v{vM}, {vr(b,4)} offset:{w*2048}
ds_write_b128 v{vM}, {vr(b+4,4)} offset:{w*2048+1024}"""
    def mld(b, so): return f"""s_or_b64 exec, vcc, 1
buffer_load_dwordx4 {vr(b,4)}, v{vM}, {W}, s{so} offen sc1
s_or_b64 exec, s[{sMK}:{sMK+1}], 1
buffer_load_dwordx4 {vr(b+4,4)}, v{vM}, {W}, s{so} offen offset:1024 sc1
s_mov_b64 exec, -1"""
    A(ld2(72))
    delay(E2)
    A(ld2(88))
    A("s_waitcnt vmcnt(2)")
    mark("enter")
    A(wr2(72))
    A(chk2(72))
    A(f"s_cbranch_scc1 L_p2b_{tag}")
    A.label(f"L_go_{tag}")
    A("s_waitcnt lgkmcnt(0)")
    mark("b0a")
    A("s_barrier")
    mark("b0b")
    for t in range(8):
        A(f"ds_read_b128 {vr(MF+4*t,4)}, v{vM} offset:{t*1024}")
    def proj(acc, kind, base, first=False):
        out = []
        for t in range(8):
            for T in range(2):
                b = base + (t*2+T)*8
                B = ar(b, 8) if kind == "a" else vr(b, 8)
                s = f"v_smfmac_f32_16x16x64_bf16 {vr(acc+4*T,4)}, {vr(MF+4*t,4)}, {B}, v{vIDX}"
                if first and T == 0: s = f"s_waitcnt lgkmcnt({7-t})\n" + s
                out.append(s)
        return out
    def swaps(b): return [f"v_permlane32_swap_b32 v{b+i}, v{b+4+i}" for i in range(4)]
    def padds(b): return [f"v_pk_add_f32 {vr(b+i,2)}, {vr(b+i,2)}, {vr(b+4+i,2)}" for i in (0, 2)]
    side = [f"buffer_load_dwordx4 v{vM}, {W}, s{sKX} offen sc1 lds",
            f"buffer_load_dwordx4 v{vM}, {W}, s{sKX} offen offset:1024 sc1 lds\ns_mov_b32 m0, s{sM0V}",
            f"buffer_load_dwordx4 v{vM}, {W}, s{sVX} offen sc1 lds",
            f"buffer_load_dwordx4 v{vM}, {W}, s{sVX} offen offset:1024 sc1 lds"]
    rest = interleave(A, proj(64, "a", WQ, first=True), side, per=1, start=1, every=4)
    assert not rest
    A("s_waitcnt vmcnt(4)")
    mark("qend")
    def adds(b): return [f"v_add_f32 v{b+i}, v{b+i}, v{b+4+i}" for i in range(4)]
    qepi = swaps(64) + adds(64) + ["v_cvt_pk_bf16_f32 v68, v64, v65", "v_cvt_pk_bf16_f32 v69, v66, v67\n" + f"ds_write_b64 v{vQW}, v[68:69]"]
    kp = proj(80, "a", WK)
    A(kp[0]); A(f"s_cmp_lt_u32 s{sSTEP}, 62\ns_cselect_b32 s{sT1}, 0x40000, 0")
    A(kp[1]); A(f"s_add_u32 s{sKX}, s{sKX}, s{sT1}\ns_add_u32 s{sVX}, s{sVX}, s{sT1}")
    rest = interleave(A, kp[2:12], qepi, per=1)
    assert not rest
    A(kp[12])
    if w == 3:
        A(f"v_mov_b32 v72, s{sSTEP}"); A(kp[13]); A("v_mov_b32 v73, 32"); A(kp[14])
        A(f"s_mov_b64 exec, 1\nbuffer_store_dword v72, v73, {W}, s{sFLG} offen sc1\ns_mov_b64 exec, -1")
    elif w == 1:
        A(f"s_cmp_lt_u32 s{sPROG}, 64\ns_cbranch_scc1 L_prf_{tag}")
        A.label(f"L_prfd_{tag}")
        A(kp[13]); A(kp[14])
    else:
        A(kp[13]); A(kp[14])
    A(kp[15])
    A("s_waitcnt lgkmcnt(0)")
    mark("b1a")
    A("s_barrier")
    mark("b1b")
    qtr = []; ktr = []
    for j in range(4):
        qtr += [f"ds_read_b64_tr_b16 {vr(QF+4*j,2)}, v{vQR} offset:{j*512}", f"ds_read_b64_tr_b16 {vr(QF+4*j+2,2)}, v{vQR} offset:{j*512+256}"]
        ktr += [f"ds_read_b64_tr_b16 {vr(KF+4*j,2)}, v{vQR} offset:{2048+j*512}", f"ds_read_b64_tr_b16 {vr(KF+4*j+2,2)}, v{vQR} offset:{2048+j*512+256}"]
    mark("kend")
    seq = [(P, 0) for P in range(4)] + [(P, f) for P in range(4) for f in (1, 2, 3)]
    buf = [32, 40, 48, 56, 64, 72, 80, 88, 24, 96, 32, 40, 48, 56, 64, 72]
    def wo_rd(q):
        P, f = seq[q]
        return [f"ds_read_b128 {vr(buf[q]+4*hf,4)}, v{vWO} offset:{(f*4+P)*2048+hf*1024}" for hf in range(2)]
    S1, S2, S0 = 0, 4, 8
    def smm(j, which):
        c = lambda b: "0" if j == 0 else vr(b, 4)
        D, Aop = {1: (S1, KX+4*j), 2: (S2, KX+16+4*j), 0: (S0, KF+4*j)}[which]
        return f"v_mfma_f32_16x16x32_bf16 {vr(D,4)}, {vr(Aop,4)}, {vr(QF+4*j,4)}, {c(D)}"
    vp = proj(TA, "v", WV)
    kepi = swaps(80) + adds(80) + [f"v_cvt_pk_bf16_f32 v{PUB}, v80, v81", f"v_cvt_pk_bf16_f32 v{PUB+1}, v82, v83\nds_write_b64 v{vQW}, {vr(PUB,2)} offset:{L_KIM-L_QIM}"]
    rest = interleave(A, vp[0:4], qtr, per=2)
    rest = interleave(A, vp[4:8], kepi[0:4], per=1)
    A("s_waitcnt lgkmcnt(0)")
    A(smm(0, 1)); A(kepi[4]); A(kepi[5]); A(smm(1, 1)); A(kepi[6]); A(kepi[7]); A(smm(2, 1)); A(kepi[8]); A(kepi[9]); A(smm(3, 1))
    rest = interleave(A, vp[8:12], wo_rd(0) + wo_rd(1), per=1)
    assert not rest
    A("s_waitcnt lgkmcnt(4)")
    mark("b2a")
    A("s_barrier")
    mark("b2b")
    rest = interleave(A, vp[12:16], ktr, per=2)
    mark("vend")
    vepi = swaps(TA) + adds(TA) + [f"v_cvt_pk_bf16_f32 v{PUB+2}, v{TA}, v{TA+1}", f"v_cvt_pk_bf16_f32 v{PUB+3}, v{TA+2}, v{TA+3}"]
    A(smm(0, 2)); A(f"v_mov_b64 v[16:17], s[{sONE}:{sONE+1}]"); A(wo_rd(8)[0])
    A(smm(1, 2)); A(f"v_mov_b64 v[18:19], s[{sONE}:{sONE+1}]"); A(wo_rd(8)[1])
    A(smm(2, 2)); A(vepi[0]); A(smm(3, 2)); A(vepi[1])
    A("s_waitcnt lgkmcnt(2)")
    pre = []
    for q in (2, 3, 4, 5, 6, 7): pre += wo_rd(q)
    P = lambda: pre.pop(0)
    A(smm(0, 0)); A(vepi[2]); A(smm(1, 0)); A(vepi[3]); A(smm(2, 0))
    A(P()); A("v_max3_f32 v12, v0, v1, v2\nv_max3_f32 v13, v3, v4, v5")
    A(smm(3, 0))
    A(P()); A("v_max3_f32 v12, v12, v6, v7\nv_max_f32 v12, v12, v13\nv_mov_b32 v13, v12")
    A(vepi[4]); A(vepi[5])
    A("v_permlane32_swap_b32 v12, v13")
    mark("send")
    A("v_max3_f32 v14, v8, v9, v10\nv_max3_f32 v12, v12, v13, v11\nv_max_f32 v12, v12, v14\nv_mov_b32 v13, v12")
    A(f"v_cndmask_b32 v8, v8, v10, s[{sHI}:{sHI+1}]\nv_cndmask_b32 v9, v9, v11, s[{sHI}:{sHI+1}]")
    A(f"v_permlane16_swap_b32 v12, v13\nv_max_f32 v12, v12, v13\nv_mul_f32 v12, s{sSC}, v12")
    mark("max")
    for i in range(0, 10, 2):
        A(f"v_pk_fma_f32 {vr(i,2)}, {vr(i,2)}, s[{sSC}:{sSC+1}], v[12:13] op_sel_hi:[1,1,0] neg_lo:[0,0,1] neg_hi:[0,0,1]")
    for i in range(8):
        A(f"v_exp_f32 v{i}, v{i}")
        if i < NEX: A(P())
    A("v_cvt_pk_bf16_f32 v12, v0, v1\nv_cvt_pk_bf16_f32 v13, v2, v3\nv_cvt_pk_bf16_f32 v14, v4, v5\nv_cvt_pk_bf16_f32 v15, v6, v7")
    A("v_exp_f32 v8, v8\nv_exp_f32 v9, v9")
    O0, O1 = 0, 4
    mark("exp")
    A(f"v_mfma_f32_16x16x32_bf16 v[20:23], v[16:19], v[12:15], 0")
    A(P()); A(vepi[6]); A(vepi[7])
    A(f"v_mfma_f32_16x16x32_bf16 {vr(O0,4)}, {vr(VX,4)}, v[12:15], 0")
    A(P()); A(vepi[8]); A(vepi[9])
    A(f"v_mfma_f32_16x16x32_bf16 {vr(O1,4)}, {vr(VX+4,4)}, v[12:15], 0")
    A(f"v_cvt_pk_bf16_f32 v{P0A}, v8, v9\nv_cvt_pk_bf16_f32 v{P0B+1}, v8, v9")
    A(f"v_permlane32_swap_b32 v{PUB+2}, v{PUB+3}")
    A(f"v_mfma_f32_16x16x16_bf16 v[20:23], v[16:17], {vr(P0A,2)}, v[20:23]")
    A(P()); A("v_mov_b64 v[8:9], 0\nv_mov_b64 v[10:11], 0")
    A(f"v_mfma_f32_16x16x16_bf16 {vr(O0,4)}, {vr(PUB+2,2)}, {vr(P0A,2)}, {vr(O0,4)}")
    A(P()); A("v_mov_b64 v[12:13], 0\nv_mov_b64 v[14:15], 0")
    A(f"v_mfma_f32_16x16x16_bf16 {vr(O1,4)}, {vr(PUB+2,2)}, {vr(P0B,2)}, {vr(O1,4)}")
    mark("pv")
    A(P())
    A("v_rcp_f32 v20, v20")
    A(f"buffer_store_dwordx4 {vr(PUB,4)}, v{vM}, {W}, s{sPUB} offen sc1")
    while len(pre) > 2: A(P())
    for i in range(0, 8, 2):
        A(f"v_pk_mul_f32 {vr(O0+i,2)}, {vr(O0+i,2)}, v[20:21] op_sel_hi:[1,0]")
    for i in range(4):
        A(f"v_cvt_pk_bf16_f32 v{16+i}, v{O0+2*i}, v{O0+2*i+1}")
    A(f"ds_write_b128 v{vM}, v[16:19] offset:{w*2048}")
    A("v_mov_b64 v[0:1], 0\nv_mov_b64 v[2:3], 0\nv_mov_b64 v[4:5], 0\nv_mov_b64 v[6:7], 0")
    mark("oex")
    OF = [16, TA, TA+4, 20]
    def cmm(q):
        P_, f = seq[q]
        return f"v_smfmac_f32_16x16x64_bf16 {vr(4*P_,4)}, {vr(OF[f],4)}, {vr(buf[q],8)}, v{vIDX} abid:1"
    A("s_waitcnt lgkmcnt(7)")
    r9 = wo_rd(9)
    A(cmm(2)); A(P()); A(cmm(3)); A(P()); A(cmm(0)); A(r9[0]); A(cmm(1)); A(r9[1])
    A(f"s_cmp_eq_u32 s{sSTEP}, 63\ns_cbranch_scc1 L_chain_end")
    mark("own")
    A(f"s_waitcnt vmcnt(1) lgkmcnt(4)")
    mark("b3a")
    A("s_barrier")
    mark("b3b")
    for f in (1, 2, 3):
        A(f"ds_read_b128 {vr(OF[f],4)}, v{vM} offset:{(w ^ f)*2048}")
    rd = []
    for q in (10, 11, 12, 13, 14, 15): rd += wo_rd(q)
    for r in rd[:4]: A(r)
    A("s_waitcnt lgkmcnt(6)"); A(cmm(4)); A(rd[4])
    A("s_waitcnt lgkmcnt(6)"); A(cmm(5)); A(rd[5])
    A("s_waitcnt lgkmcnt(6)"); A(cmm(6)); A(rd[6])
    mark("c6")
    A(cmm(7)); A(rd[7]); A(cmm(8)); A(rd[8]); A(cmm(9)); A(rd[9]); A("v_cvt_pk_bf16_f32 v16, v0, v1")
    A("s_waitcnt lgkmcnt(8)"); A(cmm(10)); A(rd[10]); A("v_cvt_pk_bf16_f32 v17, v2, v3")
    A("s_waitcnt lgkmcnt(7)"); A(cmm(11)); A(rd[11]); A(f"v_and_or_b32 v16, v16, -2, s{sTAG}")
    A("s_waitcnt lgkmcnt(6)"); A(cmm(12)); A("v_cvt_pk_bf16_f32 v18, v4, v5\nv_cvt_pk_bf16_f32 v19, v6, v7")
    A(f"buffer_store_dwordx4 v[16:19], v{vH1}, {W}, s{sPAR} offen {sc}")
    A("s_waitcnt lgkmcnt(4)"); A(cmm(13))
    A("s_waitcnt lgkmcnt(2)"); A(cmm(14))
    A("s_waitcnt lgkmcnt(0)"); A(cmm(15))
    A(f"v_cvt_pk_bf16_f32 v24, v8, v9\nv_cvt_pk_bf16_f32 v25, v10, v11\nv_and_or_b32 v24, v24, -2, s{sTAG}")
    A(f"""s_add_u32 s{sRD1}, s{sPAR}, 8192
s_and_b32 s{sT0}, s{sSTEP}, 3
s_lshl_b32 s{sT0}, s{sT0}, 18
s_add_u32 s{sRD0}, s{sT0}, s{sRDB}
s_add_u32 s{sSTEP}, s{sSTEP}, 1""")
    A("v_cvt_pk_bf16_f32 v26, v12, v13\nv_cvt_pk_bf16_f32 v27, v14, v15")
    A(f"buffer_store_dwordx4 v[24:27], v{vH1}, {W}, s{sRD1} offen {sc}")
    mark("h1")
    A(f"ds_read_b128 v[88:91], v{vM} offset:{L_SEL-L_MEM}")
    stage_reads(A, w)
    A(f"""s_add_u32 s{sPUB}, s{sPUB}, 0x20000
s_and_b32 s{sT0}, s{sSTEP}, 3
s_lshl_b32 s{sT1}, s{sT0}, 13
s_add_u32 s{sSLOT}, s{sT1}, {WS_RING:#x}
s_add_u32 s{sSLOTL}, s{sT1}, {WS_RING - L_MEM + w*2048:#x}
s_lshl_b32 s{sT0}, s{sT0}, 18
s_add_u32 s{sPAR}, s{sT0}, {WS_INB:#x}""")
    if prof:
        A(f"""s_waitcnt lgkmcnt(0)
s_lshl_b32 s30, s{S_ROLE}, 2
s_add_u32 s30, s30, {w}
s_lshl_b32 s30, s30, 6
s_add_u32 s30, s30, s{sSTEP}
s_lshl_b32 s30, s30, 5
s_add_u32 s30, s30, {WS_PROF:#x}
v_mov_b32 v8, 0""")
        for i in range(7):
            r = (sPRF + 2*i) if i < 4 else (96 if i == 6 else 62 if i == 5 else 12)
            A(f"v_mov_b32 v{0+i}, s{r}")
        A(f"v_mov_b32 v7, s{S_TMO}")
        A(f"s_mov_b64 exec, 1\nbuffer_store_dwordx4 v[0:3], v8, {W}, s30 offen\nbuffer_store_dwordx4 v[4:7], v8, {W}, s30 offen offset:16\ns_mov_b64 exec, -1")
        D1 = max(0, D1 - 96)
    delay(D1)
    A("s_waitcnt lgkmcnt(0)\ns_barrier")
    mark("p1")
    def ld1(b): return f"""buffer_load_dwordx4 {vr(b,4)}, v{vM}, {W}, s{sRD0} offen sc1
buffer_load_dwordx4 {vr(b+4,4)}, v{vM}, {W}, s{sRD0} offen offset:1024 sc1"""
    def red1(n, b): return f"""s_waitcnt vmcnt({n+1})
v_mfma_f32_16x16x32_bf16 v[92:95], v[88:91], {vr(b,4)}, 0
v_and_b32 v28, 1, v{b}
s_waitcnt vmcnt({n})
v_mfma_f32_16x16x32_bf16 v[92:95], v[88:91], {vr(b+4,4)}, v[92:95]
v_and_b32 v29, 1, v{b+4}
v_cmp_ne_u32 vcc, s{sTAG}, v28
v_cmp_ne_u32 s[{sMK}:{sMK+1}], s{sTAG}, v29
s_or_b64 s[{sMK+2}:{sMK+3}], vcc, s[{sMK}:{sMK+1}]"""
    zl = [f"v_mov_b64 {vr(b+i,2)}, 0" for b in (80, 64, TA) for i in range(0, 8, 2)] + ["v_mov_b32 v30, -1"]
    def spread(items, cycles):
        gap = max(0, cycles // max(1, len(items)) - 4)
        for z in items:
            A(z); delay(gap)
    A(ld1(0))
    spread(zl[:5], E1)
    A(ld1(8))
    spread(zl[5:], F1)
    A(red1(2, 0))
    A(f"s_cbranch_scc1 L_p1b_{tag}")
    A.label(f"L_p1ok_{tag}")
    A(f"""v_add_f32_dpp v92, v92, v92 row_ror:4 row_mask:0xf bank_mask:0xf
v_add_f32_dpp v93, v93, v93 row_ror:4 row_mask:0xf bank_mask:0xf
s_mov_b64 exec, -1
v_add_f32_dpp v92, v92, v92 row_ror:8 row_mask:0xf bank_mask:0xf
v_add_f32_dpp v93, v93, v93 row_ror:8 row_mask:0xf bank_mask:0xf
v_cvt_pk_bf16_f32 v92, v92, v93
s_mov_b64 exec, s[{sQM}:{sQM+1}]
v_min_u32 v92, -2, v92
buffer_store_dword v92, v{vH2}, {W}, s{sSLOT} offen {sc}
s_mov_b64 exec, -1
s_bfe_u32 s{sTAG}, s{sSTEP}, 0x10002
s_xor_b32 s{sTAG}, s{sTAG}, 1""")
    mark("h2")
    A(f"s_cmp_lt_u32 s{sPROG}, 64\ns_cbranch_scc1 L_prg_{tag}")
    A.label(f"L_prd_{tag}")
    A(f"""s_add_u32 s{sT0}, s{sSTEP}, 2
s_min_u32 s{sT0}, s{sT0}, 64
s_cmp_lt_u32 s{sPROG}, s{sT0}
s_cbranch_scc1 L_kvw_{tag}""")
    A.label(f"L_kvd_{tag}")
    A(f"s_branch L_loop_{tag}")
    A.label(f"L_p1b_{tag}")
    if prof: A(f"s_add_u32 s{S_TMO}, s{S_TMO}, 0x1000000")
    A.label(f"L_p1r_{tag}")
    A(mld(0, sRD0))
    A(red1(2, 8))
    A(f"s_cbranch_scc0 L_p1k_{tag}")
    A(mld(8, sRD0))
    spin_guard(A)
    A(red1(2, 0))
    A(f"s_cbranch_scc1 L_p1r_{tag}")
    A.label(f"L_p1k_{tag}")
    A(f"s_nop 2\ns_branch L_p1ok_{tag}")
    A.label(f"L_p2b_{tag}")
    if prof: A(f"s_add_u32 s{S_TMO}, s{S_TMO}, 0x10000")
    A.label(f"L_p2r_{tag}")
    A(mld(72, sSLOTL))
    A("s_waitcnt vmcnt(2)")
    A(wr2(88)); A(chk2(88))
    A(f"s_cbranch_scc0 L_go_{tag}")
    A(mld(88, sSLOTL))
    spin_guard(A)
    if prof: A(f"s_add_u32 s{S_TMO}, s{S_TMO}, 0xff")
    A("s_waitcnt vmcnt(2)")
    A(wr2(72)); A(chk2(72))
    A(f"s_cbranch_scc1 L_p2r_{tag}\ns_branch L_go_{tag}")
    if w == 1:
        A.label(f"L_prf_{tag}")
        A(f"""v_mov_b32 v73, 0
s_mov_b32 m0, {L_PRG}
s_mov_b64 exec, 1
buffer_load_dwordx4 v73, {W}, s{sFLG} offen sc1 lds
s_mov_b64 exec, -1
s_branch L_prfd_{tag}""")
    A.label(f"L_enter_{tag}")
    A(wr2(72))
    A(f"s_mov_b32 m0, s{sM0K}\ns_branch L_go_{tag}")
    A.label(f"L_kvw_{tag}")
    kv_wait(A, sT0, tag)
    A(f"s_branch L_kvd_{tag}")
    A.label(f"L_prg_{tag}")
    A(f"v_mov_b32 v92, {L_PRG}\nds_read_b128 v[92:95], v92\ns_waitcnt lgkmcnt(0)")
    prog_from(A, 92)
    A(f"s_branch L_prd_{tag}")

def end(A, prof=False):
    A.label("L_chain_end")
    istamp(A, 4, prof)
    tl(A, 5, vt=14)
    A(f"""s_waitcnt vmcnt(0)
s_barrier
s_cmp_lg_u32 s{S_W}, 0
s_cbranch_scc1 L_exit
v_mov_b32 v0, 64
v_mov_b32 v1, 32
s_mov_b64 exec, 1
buffer_store_dword v0, v1, {W}, s{sFLG} offen sc1
s_waitcnt vmcnt(0)
s_endpgm""")

def emit(A, test=False, prof=False, D1=0, D2=0, PTS=None, ends=False, **kw):
    init(A, test, prof or ends, kw.pop('NB', 12))
    for mode, sc in (("fast", ""), ("safe", "sc1")):
        for w in range(4): loop(A, mode, sc, w, prof, D1, D2, PTS, **kw)
    end(A, prof or ends)
```

```python
from asmlib import *

NAME = "parallel_sum__memory_aug_recurrent_mem_tr__mixer_token_mlp__prompt"
WS_XN   = 0x0000000
WS_H2T  = 0x0200000
WS_G    = 0x0400000
WS_YB   = 0x0600000
WS_INB  = 0x0900000
WS_RING = 0x0A00000
WS_FLAG = 0x08B0000
WS_PO   = 0x08B2000
WS_KVM  = 0x1000000
WS_KX   = 0x2000000
WS_VX   = 0x3000000
WS_QX   = 0x4000000
WS_OX   = 0x5000000
WS_PROF = 0x6000000
WS_SIZE = 0x10000000
DBG_CT = 0; DBG_CI = 4; DBG_LN = 8
DBG_B1 = 12; DBG_B2 = 16
DBG_WT = 128
DBG_DONE = 128
sLO, sHI_, sMSK = 60, 61, 62
L_LN = 131072; L_ROLE = 163832
import struct
def f2u(x): return struct.unpack("<I", struct.pack("<f", x))[0]
P_X, P_MEM0, P_WQ, P_WK, P_WV, P_WO = 64, 66, 68, 70, 72, 74
P_W1, P_B1, P_W2, P_B2, P_OUT, P_DBG, P_WS = 80, 82, 84, 86, 88, 90, 92
S_WS = 4; S_DBG = 8
S_XCC = 3; S_W = 28; S_ROLE = 29; S_TMO = 100
TMO = 1 << 17

def spin_guard(A):
    A(f"s_add_u32 s{S_TMO}, s{S_TMO}, 1\ns_bitcmp1_b32 s{S_TMO}, 15\ns_cbranch_scc1 L_exit")


def srd(A, s, p, size):
    A(f"s_mov_b32 s{s}, s{p}\ns_mov_b32 s{s+1}, s{p+1}\ns_mov_b32 s{s+2}, {size:#x}\ns_mov_b32 s{s+3}, 0x20000")

def poll_dbg_ge(A, off, target, vt=2, st=30, sleep=2, low16=False):
    lab = A.newlabel("L_pd")
    A(f"v_mov_b32 v{vt+1}, {off + DBG_DONE}")
    A.label(lab)
    A(f"""buffer_load_dword v{vt}, v{vt+1}, s[{S_DBG}:{S_DBG+3}], 0 offen sc1
s_waitcnt vmcnt(0)
v_readfirstlane_b32 s{st}, v{vt}""")
    if low16: A(f"s_and_b32 s{st+27}, s{st}, 0xffff\ns_cmp_ge_u32 s{st+27}, {target}")
    else: A(f"s_cmp_ge_u32 s{st}, {target}")
    done = A.newlabel("L_pdd")
    A(f"s_cbranch_scc1 {done}\ns_sleep {sleep}")
    spin_guard(A)
    A(f"s_branch {lab}")
    A.label(done)

def dbg_add(A, off, val=1, vt=2, ret=False, op="add"):
    A(f"""v_mov_b32 v{vt}, {val}
v_mov_b32 v{vt+1}, {off}
s_mov_b64 exec, 1
buffer_atomic_{op} v{vt}, v{vt+1}, s[{S_DBG}:{S_DBG+3}], 0 offen {'sc0' if ret else ''}
s_mov_b64 exec, -1""")

PF = [False]
TL = [False]
def tl(A, slot, vt=252, from_s=None):
    if not TL[0]: return
    if from_s is None: A("s_memrealtime s[96:97]")
    A(f"""s_lshl_b32 s97, s{S_ROLE}, 2
s_waitcnt lgkmcnt(0)
s_lshl_b32 s97, s{S_ROLE}, 2
s_add_u32 s97, s97, s{S_W}
s_lshl_b32 s97, s97, 6
s_add_u32 s97, s97, {WS_PROF + 0x200000 + slot*4:#x}
v_mov_b32 v{vt}, s{96 if from_s is None else from_s}
v_mov_b32 v{vt+1}, 0
s_mov_b64 exec, 1
buffer_store_dword v{vt}, v{vt+1}, s[{S_WS}:{S_WS+3}], s97 offen
s_mov_b64 exec, -1""")

def arrive_begin(A, off, val, vt):
    dbg_add(A, off, val=val, vt=vt, ret=True)

def arrive_end(A, off, val, target, vt, st=30, then_wait=None):
    lab = A.newlabel("L_ae")
    A(f"""v_readfirstlane_b32 s{st}, v{vt}
s_add_u32 s{st}, s{st}, {val}
s_and_b32 s{st+27}, s{st}, 0xffff
s_cmp_lg_u32 s{st+27}, {target}
s_cbranch_scc1 {lab}""")
    if then_wait is not None:
        poll_dbg_ge(A, then_wait[0] - DBG_DONE, then_wait[1], vt=vt, st=st, sleep=4, low16=True)
        off = then_wait[0]
    A(f"""v_mov_b32 v{vt}, s{st}
v_mov_b32 v{vt+1}, {off + DBG_DONE}
s_mov_b64 exec, 1
buffer_store_dword v{vt}, v{vt+1}, s[{S_DBG}:{S_DBG+3}], 0 offen sc1
s_mov_b64 exec, -1""")
    A.label(lab)

def prologue(A, nwg=256):
    if TL[0]: A("s_memrealtime s[98:99]")
    A(f"""s_cmp_ge_u32 s2, {nwg}
s_cbranch_scc1 L_exit
s_load_dwordx16 s[64:79], s[0:1], 0
s_load_dwordx8 s[80:87], s[0:1], 64
s_load_dwordx4 s[88:91], s[0:1], 96
s_load_dwordx2 s[92:93], s[0:1], 112
s_mov_b32 s{S_TMO}, 0
s_getreg_b32 s{S_XCC}, hwreg(HW_REG_XCC_ID)
s_and_b32 s{S_XCC}, s{S_XCC}, 15
v_lshrrev_b32 v1, 6, v0
v_and_b32 v0, 63, v0
v_readfirstlane_b32 s{S_W}, v1
s_waitcnt lgkmcnt(0)""")
    srd(A, S_WS, P_WS, WS_SIZE)
    srd(A, S_DBG, P_DBG, 256)
    srd(A, 12, P_X, 0x200000)
    A(f"""v_lshrrev_b32 v1, 5, v0
s_lshl_b32 s52, s{S_W}, 1
v_add_u32 v1, s52, v1
v_and_b32 v12, 31, v0
v_lshlrev_b32 v13, 10, v1
v_lshl_add_u32 v13, v12, 5, v13
s_lshl_b32 s52, s2, 13
buffer_load_dwordx4 v[4:7], v13, s[12:15], s52 offen
buffer_load_dwordx4 v[8:11], v13, s[12:15], s52 offen offset:16
s_mov_b32 s{sLO}, 0x05040100
s_mov_b32 s{sHI_}, 0x07060302
s_mov_b32 s{sMSK}, 0xffff0000""")
    if PF[0]:
        lab = A.newlabel("L_pf")
        A(f"s_cmp_eq_u32 s{S_XCC}, 0\ns_cbranch_scc1 {lab}\ns_cmp_eq_u32 s{S_W}, 0\ns_cbranch_scc1 {lab}")
        A(f"v_lshlrev_b32 v14, 4, v0\ns_lshl_b32 s52, s2, 14\ns_sub_u32 s53, s{S_W}, 1\ns_mul_i32 s53, s53, 5120\ns_add_u32 s52, s52, s53")
        for m, p in enumerate((P_WQ, P_WK, P_WV, P_WO)):
            srd(A, 16, p, 0x400000)
            A("s_add_u32 s53, s52, 4096")
            for k in range(6):
                A(f"buffer_load_dwordx4 {vr(128 + (m*6+k)*4, 4)}, v14, s[16:19], s{52 if k < 4 else 53} offen offset:{(k % 4)*1024}")
        A("s_waitcnt vmcnt(24)\ns_branch L_role_wait")
        A.label(lab)
    A(f"""s_cmp_lg_u32 s{S_W}, 0
s_cbranch_scc1 L_role_wait0
s_cmp_lg_u32 s{S_XCC}, 0
s_cbranch_scc1 L_role_worker""")
    dbg_add(A, DBG_CT, ret=True)
    A(f"""s_waitcnt vmcnt(0)
v_readfirstlane_b32 s{S_ROLE}, v2
s_cmp_lt_u32 s{S_ROLE}, 32
s_cbranch_scc1 L_role_done""")
    A.label("L_role_worker")
    dbg_add(A, DBG_WT, ret=True)
    A(f"""s_waitcnt vmcnt(0)
v_readfirstlane_b32 s{S_ROLE}, v2
s_add_u32 s{S_ROLE}, s{S_ROLE}, 32
s_cmp_lt_u32 s{S_ROLE}, {nwg}
s_cbranch_scc1 L_role_done""")
    dbg_add(A, DBG_CT, ret=True)
    A(f"""s_waitcnt vmcnt(0)
v_readfirstlane_b32 s{S_ROLE}, v2""")
    A.label("L_role_done")
    A(f"""v_mov_b32 v2, s{S_ROLE}
v_mov_b32 v3, {L_ROLE}
ds_write_b32 v3, v2
s_waitcnt lgkmcnt(0)""")
    A.label("L_role_wait0")
    A("s_waitcnt vmcnt(0)")
    A.label("L_role_wait")
    A(f"""s_barrier
v_mov_b32 v3, {L_ROLE}
ds_read_b32 v2, v3
s_waitcnt lgkmcnt(0)
v_readfirstlane_b32 s{S_ROLE}, v2""")
    tl(A, 0, vt=14, from_s=98)
    tl(A, 1, vt=14)

def bf16r(A, dst, src, tmp=None):
    A(f"v_cvt_pk_bf16_f32 v{dst}, v{src}, v{src}\nv_and_b32 v{dst}, s{sMSK}, v{dst}")

def red32(A, v, t):
    for r in (1, 2, 4, 8):
        A(f"v_add_f32_dpp v{v}, v{v}, v{v} row_ror:{r} row_mask:0xf bank_mask:0xf")
    A(f"v_mov_b32 v{t}, v{v}\nv_permlane16_swap_b32 v{v}, v{t}\nv_add_f32 v{v}, v{v}, v{t}")

def ln16(A, x, y, t):
    A(f"v_add_f32 v{t}, v{x}, v{x+1}")
    for i in range(2, 16): A(f"v_add_f32 v{t}, v{t}, v{x+i}")
    red32(A, t, t+1)
    A(f"v_mul_f32 v{t}, {f2u(1/512):#x}, v{t}")
    for i in range(16): A(f"v_sub_f32 v{y+i}, v{x+i}, v{t}")
    A(f"v_mul_f32 v{t+2}, v{y}, v{y}")
    for i in range(1, 16): A(f"v_fmac_f32 v{t+2}, v{y+i}, v{y+i}")
    red32(A, t+2, t+1)
    A(f"v_mul_f32 v{t+2}, {f2u(1/512):#x}, v{t+2}")
    bf16r(A, t, t); bf16r(A, t+2, t+2)
    A(f"v_add_f32 v{t+2}, {f2u(1e-5):#x}, v{t+2}")
    bf16r(A, t+2, t+2)
    A(f"v_sqrt_f32 v{t+2}, v{t+2}")
    bf16r(A, t+2, t+2)
    A(f"v_rcp_f32 v{t+2}, v{t+2}")
    for i in range(16):
        A(f"v_sub_f32 v{y+i}, v{x+i}, v{t}")
        bf16r(A, y+i, y+i)
        A(f"v_mul_f32 v{y+i}, v{y+i}, v{t+2}")
        bf16r(A, y+i, y+i)

def ln_task(A, vL=0):
    ROW = 1040
    W = f"s[{S_WS}:{S_WS+3}]"
    A(f"""v_lshrrev_b32 v1, 5, v{vL}
s_lshl_b32 s52, s{S_W}, 1
v_add_u32 v1, s52, v1
v_and_b32 v2, 31, v{vL}
v_mul_u32_u24 v3, {ROW}, v1
v_lshl_add_u32 v3, v2, 5, v3
v_add_u32 v3, {L_LN}, v3""")
    for i in range(8):
        A(f"v_lshlrev_b32 v{16+2*i}, 16, v{4+i}\nv_and_b32 v{17+2*i}, s{sMSK}, v{4+i}")
    ln16(A, 16, 32, 12)
    for i in range(8): A(f"v_perm_b32 v{4+i}, v{33+2*i}, v{32+2*i}, s{sHI_}")
    A("ds_write_b128 v3, v[4:7]\nds_write_b128 v3, v[8:11] offset:16")
    ln16(A, 32, 16, 12)
    for i in range(8): A(f"v_perm_b32 v{48+i}, v{17+2*i}, v{16+2*i}, s{sHI_}")
    A(f"ds_write_b128 v3, v[48:51] offset:{8*ROW}\nds_write_b128 v3, v[52:55] offset:{8*ROW+16}")
    A(f"""v_and_b32 v1, 7, v{vL}
v_lshrrev_b32 v2, 3, v{vL}
s_lshl_b32 s52, s{S_W}, 4
v_add_u32 v2, s52, v2
v_mul_u32_u24 v4, {ROW}, v1
v_lshl_add_u32 v4, v2, 4, v4
v_add_u32 v4, {L_LN}, v4
v_lshlrev_b32 v5, 8, v2
v_lshl_add_u32 v5, v1, 4, v5
v_bfe_u32 v1, v{vL}, 2, 2
v_mul_u32_u24 v6, {ROW}, v1
v_and_b32 v1, 3, v{vL}
v_lshl_add_u32 v6, v1, 3, v6
v_lshrrev_b32 v1, 4, v{vL}
v_lshl_add_u32 v6, v1, 5, v6
s_lshl_b32 s52, s{S_W}, 8
s_add_u32 s52, s52, {L_LN}
v_add_u32 v6, s52, v6
v_lshlrev_b32 v7, 4, v{vL}
s_lshr_b32 s52, s2, 1
s_lshl_b32 s52, s52, 14
s_and_b32 s53, s2, 1
s_lshl_b32 s53, s53, 7
s_add_u32 s52, s52, s53
s_add_u32 s52, s52, {WS_XN:#x}
s_lshl_b32 s53, s2, 13
s_lshl_b32 s54, s{S_W}, 11
s_add_u32 s53, s53, s54
s_add_u32 s53, s53, {WS_H2T:#x}
s_waitcnt lgkmcnt(0)
s_barrier
ds_read_b128 v[8:11], v4
ds_read_b128 v[12:15], v4 offset:128
ds_read_b64_tr_b16 v[16:17], v6 offset:{8*ROW}
ds_read_b64_tr_b16 v[18:19], v6 offset:{12*ROW}
ds_read_b64_tr_b16 v[20:21], v6 offset:{8*ROW+128}
ds_read_b64_tr_b16 v[22:23], v6 offset:{12*ROW+128}
s_waitcnt lgkmcnt(4)
buffer_store_dwordx4 v[8:11], v5, {W}, s52 offen sc1
buffer_store_dwordx4 v[12:15], v5, {W}, s52 offen offset:2048 sc1
s_waitcnt lgkmcnt(0)
buffer_store_dwordx4 v[16:19], v7, {W}, s53 offen sc1
buffer_store_dwordx4 v[20:23], v7, {W}, s53 offen offset:1024 sc1""")

HEADER = open("cdna_kernels/" + NAME + ".s.ref").read().split("; Override launch")[0]

def finish(A, path, kname=NAME + "_kernel"):
    body = pad_hazards(A.lines, verbose=True)
    txt = HEADER + "; @launch grid=(256,1,1) block=(256,1,1) lds=163840\n"
    txt += '.amdgcn_target "amdgcn-amd-amdhsa--gfx950"\n.text\n'
    txt += f".globl {kname}\n.p2align 8\n.type {kname},@function\n{kname}:\n"
    for ln in body:
        txt += (ln if ln.endswith(":") else "    " + ln) + "\n"
    txt += f""".section .rodata,"a"
.p2align 6
.amdhsa_kernel {kname}
  .amdhsa_next_free_vgpr 512
  .amdhsa_next_free_sgpr 102
  .amdhsa_accum_offset 256
  .amdhsa_group_segment_fixed_size 0
  .amdhsa_kernarg_size 120
  .amdhsa_user_sgpr_count 2
  .amdhsa_user_sgpr_kernarg_segment_ptr 1
  .amdhsa_system_sgpr_workgroup_id_x 1
  .amdhsa_float_denorm_mode_32 3
.end_amdhsa_kernel
"""
    open(path, "w").write(txt)
```

```python
from common import *
import math, struct
W = f"s[{S_WS}:{S_WS+3}]"
sWI = 31
vLN = 255

def setup(A):
    A(f"""s_sub_u32 s{sWI}, s{S_ROLE}, 32
v_mov_b32 v{vLN}, v0""")

def arrive(A, off, target, wait=True, part=0):
    lab = A.newlabel("L_arr")
    if part in (0, 1):
        if wait: A("s_waitcnt vmcnt(0)")
        A("s_barrier")
    A(f"s_cmp_lg_u32 s{S_W}, 0\ns_cbranch_scc1 {lab}")
    if part in (0, 1): arrive_begin(A, off, 1, 250)
    if part in (0, 2):
        A("s_waitcnt vmcnt(0)")
        arrive_end(A, off, 1, target, 250, then_wait=(DBG_CI, 32) if off == DBG_LN else None)
    A.label(lab)

def wg_wait_dbg(A, off, target, sleep=4):
    lab = A.newlabel("L_wgw")
    A(f"s_cmp_lg_u32 s{S_W}, 0\ns_cbranch_scc1 {lab}")
    poll_dbg_ge(A, off, target, vt=250, st=30, sleep=sleep, low16=True)
    A.label(lab)
    A("s_barrier")

def load_pairs(A, jobs, vaddr, depth, land, wait_extra=0):
    n = len(jobs)
    def issue(i):
        sb, sa, sbb, ia, ib, _, _ = jobs[i]; r = land + 2*(i % depth)
        A(f"s_mov_b32 s36, {sa:#x}\nbuffer_load_dword v{r}, v{vaddr}, s[{sb}:{sb+3}], s36 offen offset:{ia}")
        if sbb != sa: A(f"s_mov_b32 s37, {sbb:#x}")
        A(f"buffer_load_dword v{r+1}, v{vaddr}, s[{sb}:{sb+3}], s{37 if sbb != sa else 36} offen offset:{ib}")
    def retire(i):
        _, _, _, _, _, d0, d1 = jobs[i]; r = land + 2*(i % depth)
        for d, sel, t in ((d0, sLO, land-2), (d1, sHI_, land-1)):
            if d[0] == "v": A(f"v_perm_b32 v{d[1]}, v{r+1}, v{r}, s{sel}")
            else: A(f"v_perm_b32 v{t}, v{r+1}, v{r}, s{sel}\nv_accvgpr_write_b32 a{d[1]}, v{t}")
    return issue, retire, n

def qkv_weights_issue(A):
    A(f"""s_lshr_b32 s40, s{sWI}, 6          ; matrix 0 K, 1 V, 2 Q
s_bfe_u32 s41, s{sWI}, 0x50001       ; head
s_and_b32 s42, s{sWI}, 1             ; parity
s_cmp_eq_u32 s40, 0
s_cselect_b32 s16, s{P_WK}, s{P_WV}
s_cselect_b32 s17, s{P_WK+1}, s{P_WV+1}
s_cmp_eq_u32 s40, 2
s_cselect_b32 s16, s{P_WQ}, s16
s_cselect_b32 s17, s{P_WQ+1}, s17
s_mov_b32 s18, 0x400000
s_mov_b32 s19, 0x20000
v_lshrrev_b32 v60, 4, v{vLN}
v_lshlrev_b32 v60, 16, v60           ; 8g rows
v_and_b32 v61, 15, v{vLN}
v_lshl_add_u32 v60, v61, 2, v60
s_lshl_b32 s36, s41, 8
s_lshl_b32 s37, s{S_W}, 6
s_add_u32 s36, s36, s37
v_add_u32 v60, s36, v60""")
    jobs = []
    for ks in range(16):
        for q in range(4):
            row = 32*ks + 2*q
            jobs.append((16, row*8192, (row+1)*8192, 0, 0, ("a", (ks*2)*4 + q), ("a", (ks*2+1)*4 + q)))
    issue, retire, n = load_pairs(A, jobs, 60, 28, 64)
    for i in range(28): issue(i)
    def finish(extra, hook):
        for i in range(n):
            A(f"s_waitcnt vmcnt({54 + extra if i < 28 else 2*min(27, n-1-i)})")
            if i == 28: hook()
            retire(i)
            if i + 28 < n: issue(i + 28)
    return finish

def qkv(A):
    A.comment("QKV projection: weights in a[0:127]")
    sSEG, sI, sXO, sOUT, sFL, sM0 = 43, 44, 45, 46, 47, 48
    A(f"""v_lshlrev_b32 v1, 4, v{vLN}
s_lshl_b32 s36, s{S_W}, 13
v_add_u32 v2, s36, v1
s_lshl_b32 s{sXO}, s42, 15
s_add_u32 s{sXO}, s{sXO}, {WS_XN:#x}
s_lshl_b32 s{sM0}, s{S_W}, 13
s_mov_b32 s36, {WS_VX:#x}
s_cmp_eq_u32 s40, 0
s_cselect_b32 s36, {WS_KX:#x}, s36
s_cmp_eq_u32 s40, 2
s_cselect_b32 s36, {WS_QX:#x}, s36
s_lshl_b32 s37, s42, 5
s_add_u32 s37, s37, s41
s_lshl_b32 s37, s37, 13
s_add_u32 s{sOUT}, s36, s37
s_cmp_eq_u32 s40, 1
s_cselect_b32 s36, 11, 10
s_lshl_b32 s36, s{S_W}, s36
s_add_u32 s{sOUT}, s{sOUT}, s36
s_lshl_b32 s36, s41, 7
s_lshl_b32 s37, s40, 3
s_add_u32 s36, s36, s37
s_lshl_b32 s37, s42, 2
s_add_u32 s36, s36, s37
s_add_u32 s{sFL}, s36, {WS_FLAG:#x}
s_mov_b32 s{sI}, 0
v_mov_b32 v3, 0""")
    def dma(slot_expr_sgpr):
        A(f"s_add_u32 m0, s{slot_expr_sgpr}, s{sM0}")
        for k in range(4): A(f"buffer_load_dwordx4 v2, {W}, s{sXO} offen offset:{k*1024} sc1 lds")
        A(f"s_add_u32 m0, m0, 4096\ns_add_u32 s36, s{sXO}, 4096")
        for k in range(4): A(f"buffer_load_dwordx4 v2, {W}, s36 offen offset:{k*1024} sc1 lds")
        A(f"s_add_u32 s{sXO}, s{sXO}, 0x10000")
    for k in range(3):
        A(f"s_mov_b32 s49, {k*32768}"); dma(49)
    for var in ("kq", "v"):
        if var == "kq": A("s_cmp_eq_u32 s40, 1\ns_cbranch_scc1 L_qkv_v")
        A.label(f"L_qkv_{var}")
        A(f"""s_waitcnt vmcnt(10)
s_barrier
s_and_b32 s49, s{sI}, 3
s_lshl_b32 s50, s49, 15
v_add_u32 v5, s50, v1
s_add_u32 s49, s49, 3
s_and_b32 s49, s49, 3
s_lshl_b32 s49, s49, 15""")
        for k in range(4): A(f"ds_read_b128 {vr(8+4*k,4)}, v5 offset:{(k&1)*16384 + (k>>1)*1024}")
        lf = A.newlabel("L_qf"); ld = A.newlabel("L_qd")
        A(f"""s_cmp_lg_u32 s{S_W}, 0
s_cbranch_scc1 {lf}
s_cmp_lt_u32 s{sI}, 2
s_cbranch_scc1 {lf}
s_sub_u32 s36, s{sI}, 1
v_mov_b32 v4, s36
s_mov_b64 exec, 1
buffer_store_dword v4, v3, {W}, s{sFL} offen sc1
s_mov_b64 exec, -1""")
        A.label(lf)
        dma(49)
        ACC = 40
        for ks in range(16):
            if ks + 2 < 16:
                for tt in range(2):
                    A(f"ds_read_b128 {vr(8 + ((ks+2) % 4)*8 + tt*4, 4)}, v5 offset:{tt*16384 + (ks+2)*1024}")
            A(f"s_waitcnt lgkmcnt({min(4, 2*(15-ks))})")
            for tt in range(2):
                for T in range(2):
                    d = vr(ACC + (tt*2+T)*4, 4); x = vr(8 + (ks % 4)*8 + tt*4, 4); wf = ar((ks*2+T)*4, 4)
                    c = "0" if ks == 0 else d
                    A(f"v_mfma_f32_16x16x32_bf16 {d}, {wf}, {x}, {c}" if var == "kq" else f"v_mfma_f32_16x16x32_bf16 {d}, {x}, {wf}, {c}")
        for o in range(2):
            t0, t1 = ((o*2, o*2+1) if var == "kq" else (o, 2+o))
            for k, t in enumerate((t0, t1)):
                A(f"v_cvt_pk_bf16_f32 v{56+o*4+2*k}, v{ACC+t*4}, v{ACC+t*4+1}\nv_cvt_pk_bf16_f32 v{56+o*4+2*k+1}, v{ACC+t*4+2}, v{ACC+t*4+3}")
        if var == "kq":
            A(f"s_add_u32 s36, s{sOUT}, 4096\nbuffer_store_dwordx4 v[56:59], v1, {W}, s{sOUT} offen sc1\nbuffer_store_dwordx4 v[60:63], v1, {W}, s36 offen sc1")
        else:
            A(f"buffer_store_dwordx4 v[56:59], v1, {W}, s{sOUT} offen sc1\nbuffer_store_dwordx4 v[60:63], v1, {W}, s{sOUT} offen offset:1024 sc1")
        A(f"""s_add_u32 s{sOUT}, s{sOUT}, 0x80000
s_add_u32 s{sI}, s{sI}, 1
s_cmp_lt_u32 s{sI}, 32
s_cbranch_scc1 L_qkv_{var}""")
        if var == "kq": A("s_branch L_qkv_end")
    A.label("L_qkv_end")
    lf = A.newlabel("L_qf")
    A(f"""s_waitcnt vmcnt(0)
s_barrier
s_cmp_lg_u32 s{S_W}, 0
s_cbranch_scc1 {lf}
v_mov_b32 v4, 32
s_mov_b64 exec, 1
buffer_store_dword v4, v3, {W}, s{sFL} offen sc1
s_mov_b64 exec, -1""")
    A.label(lf)

def gemm_b(A, which, stile):
    one = which == 1
    nks = 16 if one else 14
    rstride = 3584 if one else 4096
    nb = 28 if one else 32
    FB = WS_H2T if one else WS_G
    srd(A, 12, P_W1 if one else P_W2, 2048*3584 if one else 1792*4096)
    srd(A, 16, P_B1 if one else P_B2, 3584 if one else 4096)
    if one: A(f"s_mul_hi_u32 s41, s{stile}, {((1 << 32) + 27)//28:#x}\ns_mul_i32 s40, s41, 28\ns_sub_u32 s40, s{stile}, s40")
    else: A(f"s_lshr_b32 s41, s{stile}, 5\ns_and_b32 s40, s{stile}, 31")
    A(f"""v_and_b32 v1, 15, v{vLN}
v_lshrrev_b32 v2, 4, v{vLN}
v_mul_u32_u24 v3, {8*rstride}, v2
v_lshl_add_u32 v3, v1, 3, v3
s_mul_i32 s36, s{S_W}, {nks*32*rstride}
s_lshl_b32 s37, s40, 7
s_add_u32 s36, s36, s37
v_add_u32 v3, s36, v3
v_lshlrev_b32 v4, 13, v2""")
    if one: A("v_lshl_add_u32 v4, v1, 4, v4")
    else: A("v_lshrrev_b32 v5, 2, v1\nv_lshl_add_u32 v4, v5, 7, v4\nv_and_b32 v5, 3, v1\nv_lshl_add_u32 v4, v5, 4, v4")
    A(f"""s_mul_i32 s36, s{S_W}, {nks*4*8192}
s_lshl_b32 s37, s41, 11
s_add_u32 s36, s36, s37
s_add_u32 s36, s36, {FB:#x}
v_add_u32 v4, s36, v4""")
    if one: A("s_lshl_b32 s36, s40, 7\nv_lshlrev_b32 v5, 5, v2\nbuffer_load_dwordx4 v[8:11], v5, s[16:19], s36 offen\nbuffer_load_dwordx4 v[12:15], v5, s[16:19], s36 offen offset:16")
    else: A("s_lshl_b32 s36, s40, 7\nv_lshlrev_b32 v5, 3, v1\nbuffer_load_dwordx2 v[8:9], v5, s[16:19], s36 offen")
    NST = 3
    RAW = 16; FR = RAW + 16*NST; PF = FR + 32*NST
    def foff(t): return t*256 if one else (t >> 1)*512 + (t & 1)*64
    def issue(ks):
        st = ks % NST
        for r in range(8):
            A(f"s_mov_b32 s36, {(32*ks + r)*rstride:#x}\nbuffer_load_dwordx2 {vr(RAW + st*16 + 2*r, 2)}, v3, s[12:15], s36 offen")
        A(f"s_mov_b32 s36, {ks*32768:#x}")
        for t in range(8):
            A(f"buffer_load_dwordx4 {vr(FR + st*32 + 4*t, 4)}, v4, {W}, s36 offen offset:{foff(t)} sc1")
    for ks in range(NST): issue(ks)
    for ks in range(nks):
        st = ks % NST
        left = min(NST - 1, nks - 1 - ks)
        A(f"s_waitcnt vmcnt({16*left + 8})")
        for j in range(4):
            for q in range(4):
                A(f"v_perm_b32 v{PF + j*4 + q}, v{RAW + st*16 + 4*q + 2 + (j >> 1)}, v{RAW + st*16 + 4*q + (j >> 1)}, s{sHI_ if j & 1 else sLO}")
        for t in range(8):
            A(f"s_waitcnt vmcnt({16*left + 7 - t})")
            for j in range(4):
                d = ar((t*4 + j)*4, 4); c = "0" if ks == 0 else d
                a_, b_ = vr(PF + j*4, 4), vr(FR + st*32 + 4*t, 4)
                A(f"v_mfma_f32_16x16x32_bf16 {d}, {a_}, {b_}, {c}" if one else f"v_mfma_f32_16x16x32_bf16 {d}, {b_}, {a_}, {c}")
        if ks + NST < nks: issue(ks + NST)
    A(f"v_lshlrev_b32 v6, 4, v{vLN}\ns_nop 7")
    for w in range(4):
        lab = A.newlabel("L_gw")
        A(f"s_cmp_lg_u32 s{S_W}, {w}\ns_cbranch_scc1 {lab}")
        for dst in range(4):
            if dst == w:
                for k in range(32): A(f"v_accvgpr_read_b32 v{16+k}, a{dst*32 + k}")
            else:
                off = (dst*3 + ((w ^ dst) - 1))*8192
                A(f"v_add_u32 v7, {off}, v6")
                for k in range(8): A(f"ds_write_b128 v7, {ar(dst*32 + 4*k, 4)} offset:{k*1024}")
        A.label(lab)
    A(f"s_mul_i32 s36, s{S_W}, {3*8192}\nv_add_u32 v7, s36, v6\ns_waitcnt lgkmcnt(0)\ns_barrier")
    for s_ in range(3):
        for k in range(8): A(f"ds_read_b128 {vr(48 + s_*32 + 4*k, 4)}, v7 offset:{s_*8192 + k*1024}")
        if s_ > 0:
            A("s_waitcnt lgkmcnt(8)")
            for k in range(32): A(f"v_add_f32 v{16+k}, v{16+k}, v{48 + (s_-1)*32 + k}")
    A("s_waitcnt lgkmcnt(0)")
    for k in range(32): A(f"v_add_f32 v{16+k}, v{16+k}, v{48 + 64 + k}")
    if one:
        for i in range(8): A(f"v_lshlrev_b32 v{48+2*i}, 16, v{8+i}\nv_and_b32 v{49+2*i}, s{sMSK}, v{8+i}")
        c1 = -2*math.sqrt(2/math.pi)*math.log2(math.e)
        A(f"s_mov_b32 s36, {f2u(c1):#x}\ns_mov_b32 s37, {f2u(c1*0.044715):#x}\nv_mov_b32 v64, s36")
        for tl in range(2):
            for j in range(4):
                for r in range(4):
                    x = 16 + tl*16 + j*4 + r
                    bf16r(A, x, x)
                    A(f"v_add_f32 v{x}, v{x}, v{48 + 4*r + j}")
                    bf16r(A, x, x)
                    A(f"""v_mul_f32 v65, v{x}, v{x}
v_fma_f32 v65, v65, s37, v64
v_mul_f32 v65, v65, v{x}
v_exp_f32 v65, v65
v_add_f32 v65, 1.0, v65
v_rcp_f32 v65, v65
v_mul_f32 v{x}, v{x}, v65""")
        A(f"""v_lshlrev_b32 v5, 14, v2
v_lshl_add_u32 v5, v1, 4, v5
s_lshl_b32 s36, s40, 16
s_lshl_b32 s37, s41, 11
s_add_u32 s36, s36, s37
s_lshl_b32 s37, s{S_W}, 9
s_add_u32 s36, s36, s37
s_add_u32 s36, s36, {WS_G:#x}
s_add_u32 s37, s36, 8192""")
        for tl in range(2):
            for hh in range(2):
                for q in range(4):
                    e0 = 8*hh + 2*q; e1 = e0 + 1
                    A(f"v_cvt_pk_bf16_f32 v{68 + (tl*2+hh)*4 + q}, v{16 + tl*16 + (e0 & 3)*4 + (e0 >> 2)}, v{16 + tl*16 + (e1 & 3)*4 + (e1 >> 2)}")
                A(f"buffer_store_dwordx4 {vr(68 + (tl*2+hh)*4, 4)}, v5, {W}, s{36+hh} offen offset:{tl*256} sc1")
    else:
        A(f"v_lshlrev_b32 v48, 16, v8\nv_and_b32 v49, s{sMSK}, v8\nv_lshlrev_b32 v50, 16, v9\nv_and_b32 v51, s{sMSK}, v9")
        A(f"""v_lshlrev_b32 v5, 12, v1
v_lshl_add_u32 v5, v2, 4, v5
s_lshl_b32 s36, s40, 16
s_lshl_b32 s37, s41, 8
s_add_u32 s36, s36, s37
s_lshl_b32 s37, s{S_W}, 6
s_add_u32 s36, s36, s37
s_add_u32 s36, s36, {WS_YB:#x}""")
        for j in range(4):
            for tl in range(2):
                for r in range(4):
                    x = 16 + tl*16 + j*4 + r
                    bf16r(A, x, x)
                    A(f"v_add_f32 v{x}, v{x}, v{48+j}")
                for q in range(2):
                    x = 16 + tl*16 + j*4 + 2*q
                    A(f"v_cvt_pk_bf16_f32 v{68 + j*4 + tl*2 + q}, v{x}, v{x+1}")
            A(f"buffer_store_dwordx4 {vr(68 + j*4, 4)}, v5, {W}, s36 offen offset:{j*1024} sc1")
    arrive(A, DBG_B1 if one else DBG_B2, 112 if one else 128)

def outproj(A):
    sP, sU, sPB = 40, 41, 42
    srd(A, 12, P_WO, 0x400000); srd(A, 16, P_X, 0x200000); srd(A, 20, P_OUT, 0x200000)
    A(f"""s_and_b32 s{sP}, s{sWI}, 15
s_lshr_b32 s{sU}, s{sWI}, 4
v_and_b32 v1, 15, v{vLN}
v_lshrrev_b32 v2, 4, v{vLN}
v_lshlrev_b32 v3, 13, v2            ; 8g rows
v_lshl_add_u32 v3, v1, 2, v3
s_lshl_b32 s36, s{S_W}, 20
s_lshl_b32 s37, s{sP}, 6
s_add_u32 s36, s36, s37
v_add_u32 v3, s36, v3""")
    jobs = []
    for kk in range(32):
        for q, (ra, rb) in enumerate(((0, 2), (4, 6), (1, 3), (5, 7))):
            base = (32*kk + (ra & 4))*1024
            jobs.append((12, base, base, (ra & 3)*1024, (rb & 3)*1024, ("a", (kk*2)*4 + q), ("a", (kk*2+1)*4 + q)))
    issue, retire, n = load_pairs(A, jobs, 3, 28, 64)
    for i in range(28): issue(i)
    for i in range(n):
        A(f"s_waitcnt vmcnt({2*min(27, n-1-i)})")
        retire(i)
        if i + 28 < n: issue(i + 28)
    tl(A, 10)
    wg_wait_dbg(A, DBG_B2, 128)
    tl(A, 11)
    A(f"""v_lshlrev_b32 v4, 4, v{vLN}
v_lshlrev_b32 v5, 2, v{vLN}
v_lshlrev_b32 v6, 10, v1
v_lshl_add_u32 v6, v2, 4, v6
s_lshl_b32 s36, s{sP}, 6
v_add_u32 v6, s36, v6               ; tok*1024 + P*64 + g*16
s_lshl_b32 s36, s{S_W}, 11
v_add_u32 v7, s36, v4
s_mov_b32 s{sPB}, 0""")
    A.label("L_op_loop")
    A(f"""s_and_b32 s36, s{sU}, 3
s_lshl_b32 s36, s36, 7
s_add_u32 s44, s36, {WS_PO:#x}
s_lshr_b32 s43, s{sU}, 2
s_lshl_b32 s45, s{sU}, 14""")
    lx = A.newlabel("L_opx")
    A(f"""s_cmp_lg_u32 s{S_W}, 0
s_cbranch_scc1 {lx}
s_add_u32 s36, s45, {WS_YB:#x}
buffer_load_dwordx4 v[8:11], v6, s[16:19], s45 offen
buffer_load_dwordx4 v[12:15], v6, {W}, s36 offen sc1""")
    A.label("L_op_poll")
    A(f"""s_mov_b32 exec_hi, 0
buffer_load_dword v16, v5, {W}, s44 offen sc1
s_waitcnt vmcnt(0)
v_cmp_gt_u32 s[46:47], s43, v16
v_cmp_ge_u32 vcc, s43, v16
s_mov_b64 exec, -1
s_cbranch_vccz {lx}
s_cmp_eq_u64 s[46:47], 0
s_cbranch_scc1 L_op_near
s_sleep 48""")
    A.label("L_op_near")
    A("s_sleep 3")
    spin_guard(A)
    A("s_branch L_op_poll")
    A.label(lx)
    A("s_barrier")
    A(f"""s_mov_b32 s{S_TMO}, 0
s_lshl_b32 s36, s{sU}, 17
s_lshl_b32 s37, s{S_W}, 15
s_add_u32 s36, s36, s37
s_add_u32 s36, s36, {WS_OX:#x}""")
    for kk in range(32):
        if kk and kk % 4 == 0: A("s_add_u32 s36, s36, 4096")
        A(f"buffer_load_dwordx4 {vr(64 + 4*kk, 4)}, v4, {W}, s36 offen offset:{(kk % 4)*1024} sc1")
    for kk in range(32):
        A(f"s_waitcnt vmcnt({31-kk})")
        for T in range(2):
            d = vr(24 + 4*T, 4)
            A(f"v_mfma_f32_16x16x32_bf16 {d}, {ar((kk*2+T)*4, 4)}, {vr(64 + 4*kk, 4)}, {'0' if kk == 0 else d}")
    ly = A.newlabel("L_opy"); lz = A.newlabel("L_opz")
    A(f"""v_add_u32 v17, s{sPB}, v7
s_cmp_eq_u32 s{S_W}, 0
s_cbranch_scc1 {ly}
s_nop 4
ds_write_b128 v17, v[24:27]
ds_write_b128 v17, v[28:31] offset:1024
s_waitcnt lgkmcnt(0)
s_barrier
s_branch {lz}""")
    A.label(ly)
    A("s_barrier")
    for s_ in range(3):
        A(f"ds_read_b128 {vr(32 + 8*s_, 4)}, v17 offset:{(s_+1)*2048}\nds_read_b128 {vr(36 + 8*s_, 4)}, v17 offset:{(s_+1)*2048 + 1024}")
    for s_ in range(3):
        A(f"s_waitcnt lgkmcnt({4 - 2*s_})")
        for k in range(8): A(f"v_add_f32 v{24+k}, v{24+k}, v{32 + 8*s_ + k}")
    for r in range(4):
        for T in range(2):
            x = 24 + 4*T + r
            bf16r(A, x, x)
            A(f"v_lshlrev_b32 v18, 16, v{8+r}" if T == 0 else f"v_and_b32 v18, s{sMSK}, v{8+r}")
            A(f"v_add_f32 v{x}, v{x}, v18")
            bf16r(A, x, x)
            A(f"v_lshlrev_b32 v18, 16, v{12+r}" if T == 0 else f"v_and_b32 v18, s{sMSK}, v{12+r}")
            A(f"v_add_f32 v{x}, v{x}, v18")
        A(f"v_cvt_pk_bf16_f32 v{20+r}, v{24+r}, v{28+r}")
    A("buffer_store_dwordx4 v[20:23], v6, s[20:23], s45 offen")
    A.label(lz)
    A(f"""s_xor_b32 s{sPB}, s{sPB}, 8192
s_add_u32 s{sU}, s{sU}, 12
s_cmp_lt_u32 s{sU}, 128
s_cbranch_scc1 L_op_loop
s_waitcnt vmcnt(0)""")
    tl(A, 12)
    A("s_waitcnt vmcnt(0)\ns_endpgm")

def attention(A):
    sH, sSEG, sFL, sRDY, sPM, sSC, sHM, sPO = 40, 41, 42, 43, 44, 46, 48, 58
    KV, KF, OB, PK = 64, 80, 96, 128
    A(f"""s_sub_u32 s{sH}, s{sWI}, 192
s_lshr_b32 s{sSEG}, s{S_W}, 1
s_lshl_b32 s36, s{sH}, 7
s_add_u32 s{sFL}, s36, {WS_FLAG:#x}
s_mov_b32 s{sRDY}, 0
s_mov_b32 s{sPM}, 0
s_mov_b32 s{sSC}, {f2u(math.log2(math.e)/math.sqrt(128.0)):#x}
s_mov_b32 s{sSC+1}, s{sSC}
s_mov_b32 s{sHM}, 0
s_mov_b32 s{sHM+1}, -1
s_lshl_b32 s36, s{S_W}, 7
s_lshl_b32 s37, s{sH}, 2
s_add_u32 s36, s36, s37
s_add_u32 s{sPO}, s36, {WS_PO:#x}
v_and_b32 v1, 15, v{vLN}
v_lshrrev_b32 v2, 4, v{vLN}
v_lshlrev_b32 v3, 4, v{vLN}
v_lshrrev_b32 v6, 1, v2
v_lshlrev_b32 v6, 8, v6
v_lshl_add_u32 v6, v1, 4, v6
v_and_b32 v7, 1, v2
v_lshl_add_u32 v6, v7, 3, v6
s_lshl_b32 s36, s{S_W}, 11
v_add_u32 v4, s36, v6
v_lshrrev_b32 v6, 2, v1
v_lshl_add_u32 v6, v2, 2, v6
v_lshlrev_b32 v6, 4, v6
v_and_b32 v7, 1, v1
v_lshl_add_u32 v6, v7, 3, v6
v_add_u32 v5, s36, v6
v_lshlrev_b32 v6, 2, v2
v_mov_b32 v8, 0
v_mov_b32 v9, {f2u(-1e9*math.sqrt(128.0)):#x}
v_mov_b32 v56, 0x3f803f80
v_mov_b32 v57, 0x3f803f80
v_mov_b32 v58, 0x3f803f80
v_mov_b32 v59, 0x3f803f80
v_mov_b32 v61, 0
v_mov_b32 v62, 0""")
    for r in range(4): A(f"v_add_u32 v7, {r}, v6\nv_cmp_le_u32 s[{50+2*r}:{51+2*r}], v7, v1")
    def wait_qkv(seg):
        lp = A.newlabel("L_atp"); lh = A.newlabel("L_ath")
        A(f"s_cmp_gt_u32 s{sRDY}, s{seg}\ns_cbranch_scc1 {lh}")
        A.label(lp)
        A(f"""buffer_load_dwordx4 v[10:13], v8, {W}, s{sFL} offen sc1
buffer_load_dwordx2 v[14:15], v8, {W}, s{sFL} offen offset:16 sc1
s_waitcnt vmcnt(0)
v_min3_u32 v10, v10, v12, v14
v_min3_u32 v11, v11, v13, v15
v_lshlrev_b32 v10, 1, v10
v_lshl_or_b32 v11, v11, 1, 1
v_min_u32 v10, v10, v11
v_readfirstlane_b32 s{sRDY}, v10
s_cmp_gt_u32 s{sRDY}, s{seg}
s_cbranch_scc1 {lh}
s_sleep 8""")
        spin_guard(A)
        A(f"s_branch {lp}")
        A.label(lh)
    def fetch(qt, st, seg):
        A(f"s_lshl_b32 s36, s{seg}, 5\ns_add_u32 s36, s36, s{sH}\ns_lshl_b32 s36, s36, 13")
        A(f"s_add_u32 s37, s36, {WS_QX + qt*4096:#x}")
        for k in range(4): A(f"buffer_load_dwordx4 {ar(128*st + 4*k, 4)}, v3, {W}, s37 offen offset:{k*1024} sc1")
        A(f"s_add_u32 s37, s36, {WS_KX:#x}\ns_add_u32 s38, s37, 4096")
        for k in range(4*(qt+1)): A(f"buffer_load_dwordx4 {ar(128*st + 16 + 4*k, 4)}, v3, {W}, s{37 + (k >> 2)} offen offset:{(k & 3)*1024} sc1")
        A(f"s_add_u32 s37, s36, {WS_VX:#x}\ns_add_u32 s38, s37, 4096")
        for k in range(8): A(f"buffer_load_dwordx4 {ar(128*st + 48 + 4*k, 4)}, v3, {W}, s{37 + (k >> 2)} offen offset:{(k & 3)*1024} sc1")
    def unit(qt, st):
        Q, K, V = 128*st, 128*st + 16, 128*st + 48
        A("s_waitcnt vmcnt(1)")
        tiles = [(16, 0)] if qt == 0 else [(16, 0), (20, 1)]
        for j in range(4):
            for d, kt in tiles:
                A(f"v_mfma_f32_16x16x32_bf16 {vr(d,4)}, {ar(K + kt*16 + 4*j, 4)}, {ar(Q + 4*j, 4)}, {'0' if j == 0 else vr(d,4)}")
        lp = A.newlabel("L_atm"); lh = A.newlabel("L_atn")
        A(f"s_cmp_gt_u32 s{sPM}, s{sSEG}\ns_cbranch_scc1 {lh}")
        A.label(lp)
        A(f"""buffer_load_dword v10, v8, {W}, s{sFL} offen offset:32 sc1
s_waitcnt vmcnt(0)
v_readfirstlane_b32 s{sPM}, v10
s_cmp_gt_u32 s{sPM}, s{sSEG}
s_cbranch_scc1 {lh}
s_cmp_eq_u32 s{sPM}, s{sSEG}
s_cbranch_scc1 {lp}_n
s_sleep 16""")
        A.label(f"{lp}_n")
        A("s_sleep 2")
        spin_guard(A)
        A(f"s_branch {lp}")
        A.label(lh)
        A(f"""s_mov_b32 s{S_TMO}, 0
s_lshl_b32 s36, s{sSEG}, 5
s_add_u32 s36, s36, s{sH}
s_lshl_b32 s36, s36, 12
s_add_u32 s36, s36, {WS_KVM:#x}""")
        for k in range(4): A(f"buffer_load_dwordx4 {vr(KV + 4*k, 4)}, v3, {W}, s36 offen offset:{k*1024} sc1")
        dg = 16 + 4*qt
        for r in range(4): A(f"v_cndmask_b32 v{dg+r}, v9, v{dg+r}, s[{50+2*r}:{51+2*r}]")
        toks = list(range(16, 20 + 4*qt))
        A(f"v_max_f32 v36, v{toks[0]}, v{toks[1]}")
        for i in range(2, len(toks), 2): A(f"v_max3_f32 v36, v36, v{toks[i]}, v{toks[i+1]}")
        A("v_mov_b32 v37, v36\nv_permlane32_swap_b32 v36, v37\nv_max_f32 v36, v36, v37")
        A(f"""s_lshl_b32 s45, s{sSEG}, 6
s_add_u32 s45, s45, s{sH}
s_lshl_b32 s45, s45, 12
s_add_u32 s45, s45, {WS_OX + qt*0x20000:#x}
s_add_u32 s39, s{sSEG}, 2
s_min_u32 s39, s39, 63""")
        for k in range(4):
            A(f"s_waitcnt vmcnt({3-k})\nds_write_b64 v4, {vr(KV + 4*k, 2)} offset:{k*512}")
        A("s_waitcnt lgkmcnt(0)")
        for j in range(4):
            A(f"ds_read_b64_tr_b16 {vr(KF + 4*j, 2)}, v5 offset:{j*512}\nds_read_b64_tr_b16 {vr(KF + 4*j + 2, 2)}, v5 offset:{j*512 + 256}")
        for j in range(4):
            A(f"s_waitcnt lgkmcnt({6 - 2*j})")
            A(f"v_mfma_f32_16x16x32_bf16 v[28:31], {vr(KF + 4*j, 4)}, {ar(Q + 4*j, 4)}, {'0' if j == 0 else 'v[28:31]'}")
        A("v_max3_f32 v36, v36, v28, v29\nv_max3_f32 v36, v36, v30, v31\nv_mov_b32 v37, v36")
        A(f"v_cndmask_b32 v28, v28, v30, s[{sHM}:{sHM+1}]\nv_cndmask_b32 v29, v29, v31, s[{sHM}:{sHM+1}]")
        A(f"v_permlane16_swap_b32 v36, v37\nv_max_f32 v36, v36, v37\nv_mul_f32 v36, s{sSC}, v36")
        for b in toks[::2] + [28]:
            A(f"v_pk_fma_f32 {vr(b,2)}, {vr(b,2)}, s[{sSC}:{sSC+1}], v[36:37] op_sel_hi:[1,1,0] neg_lo:[0,0,1] neg_hi:[0,0,1]")
        for b in toks + [28, 29]: A(f"v_exp_f32 v{b}, v{b}")
        for i in range(4):
            if 2*i < len(toks): A(f"v_cvt_pk_bf16_f32 v{40+i}, v{toks[2*i]}, v{toks[2*i+1]}")
            else: A(f"v_mov_b32 v{40+i}, 0")
        A("v_cvt_pk_bf16_f32 v60, v28, v29\nv_cvt_pk_bf16_f32 v63, v28, v29")
        A("v_mfma_f32_16x16x32_bf16 v[44:47], v[56:59], v[40:43], 0")
        for et in range(8):
            A(f"v_mfma_f32_16x16x32_bf16 {vr(OB + 4*et, 4)}, {ar(V + 4*et, 4)}, v[40:43], 0")
        A("v_mfma_f32_16x16x16_bf16 v[44:47], v[56:57], v[60:61], v[44:47]")
        for et in range(8):
            A(f"v_mfma_f32_16x16x16_bf16 {vr(OB + 4*et, 4)}, {vr(KV + 4*(et >> 1) + 2, 2)}, {vr(60 + 2*(et & 1), 2)}, {vr(OB + 4*et, 4)}")
        A("v_rcp_f32 v44, v44")
        for j in range(4):
            for i in range(0, 8, 2): A(f"v_pk_mul_f32 {vr(OB + 8*j + i, 2)}, {vr(OB + 8*j + i, 2)}, v[44:45] op_sel_hi:[1,0]")
            for i in range(4): A(f"v_cvt_pk_bf16_f32 v{PK + 4*j + i}, v{OB + 8*j + 2*i}, v{OB + 8*j + 2*i + 1}")
            A(f"buffer_store_dwordx4 {vr(PK + 4*j, 4)}, v3, {W}, s45 offen offset:{j*1024} sc1")
        wait_qkv(39)
        fetch(qt, st ^ 1, 39)
        A(f"""s_lshr_b32 s36, s{sSEG}, 1
s_add_u32 s36, s36, 1
v_mov_b32 v10, s36
s_waitcnt vmcnt({12 + 4*(qt+1)})
s_mov_b64 exec, 1
buffer_store_dword v10, v8, {W}, s{sPO} offen sc1
s_mov_b64 exec, -1
s_add_u32 s{sSEG}, s{sSEG}, 2""")
    A(f"s_bitcmp1_b32 s{S_W}, 0\ns_cbranch_scc1 L_at_1_pre")
    for qt in range(2):
        A.label(f"L_at_{qt}_pre")
        wait_qkv(sSEG)
        fetch(qt, 0, sSEG)
        A("s_waitcnt vmcnt(0)")
        A.label(f"L_at_{qt}")
        unit(qt, 0)
        unit(qt, 1)
        A(f"s_cmp_lt_u32 s{sSEG}, 64\ns_cbranch_scc1 L_at_{qt}\ns_waitcnt vmcnt(0)")
        tl(A, 12)
        A("s_waitcnt vmcnt(0)\ns_endpgm")

def emit(A, attb1=False):
    A.label("L_worker")
    setup(A)
    A(f"s_cmp_ge_u32 s{sWI}, 192\ns_cbranch_scc1 L_att_wg")
    fin = qkv_weights_issue(A)
    ln_task(A)
    tl(A, 2)
    fin(4 + (1 if TL[0] else 0), lambda: arrive(A, DBG_LN, 224, wait=False, part=1))
    arrive(A, DBG_LN, 224, part=2)
    tl(A, 3)
    wg_wait_dbg(A, DBG_CI, 32)
    tl(A, 4)
    qkv(A)
    tl(A, 5)
    if attb1: A(f"s_cmp_ge_u32 s{sWI}, 80\ns_cbranch_scc1 L_no_b1\ns_add_u32 s39, s{sWI}, 32\ns_barrier\ns_branch L_b1")
    else: A(f"s_cmp_ge_u32 s{sWI}, 112\ns_cbranch_scc1 L_no_b1\ns_mov_b32 s39, s{sWI}\ns_barrier\ns_branch L_b1")
    A.label("L_att_wg")
    ln_task(A)
    arrive(A, DBG_LN, 224)
    wg_wait_dbg(A, DBG_CI, 32)
    A(f"s_sub_u32 s39, s{sWI}, 192")
    if not attb1: A("s_branch L_att")
    A.label("L_b1")
    tl(A, 6)
    gemm_b(A, 1, 39)
    tl(A, 7)
    A(f"s_cmp_ge_u32 s{sWI}, 192\ns_cbranch_scc1 L_att")
    A.label("L_no_b1")
    A(f"s_cmp_lt_u32 s{sWI}, 64\ns_cbranch_scc1 L_no_b2\ns_sub_u32 s39, s{sWI}, 64")
    wg_wait_dbg(A, DBG_B1, 112)
    tl(A, 8)
    gemm_b(A, 2, 39)
    tl(A, 9)
    A.label("L_no_b2")
    outproj(A)
    A.label("L_att")
    attention(A)
```

```python
import sys
from common import *
import chain, workers
def build_src(path, **kw):
    TL[0] = kw.pop('tl', False)
    PF[0] = kw.pop('pf', False)
    A = Asm()
    prologue(A)
    A(f"s_cmp_ge_u32 s{S_ROLE}, 32\ns_cbranch_scc0 L_chain\ns_branch L_worker")
    A.label("L_exit")
    A("s_endpgm")
    A.label("L_chain")
    for k_, v_ in dict(D1=208, E1=48, F1=160, D2=128, E2=128).items(): kw.setdefault(k_, v_)
    wk = {k: kw.pop(k) for k in ('attb1',) if k in kw}
    chain.emit(A, test=False, **kw)
    workers.emit(A, **wk)
    finish(A, path)
if __name__ == "__main__":
    build_src(sys.argv[1] if len(sys.argv) > 1 else "cdna_kernels/" + NAME + ".s")
```

```python
from common import *
import math, struct

L_WO = 0; L_MEM = 131072; L_STG = L_MEM + 8192; L_QIM = L_STG + 16384; L_KIM = L_QIM + 2048
L_SEL = L_KIM + 2048; L_PRG = L_SEL + 1024; L_OEX = L_PRG + 256; L_FLG = L_OEX + 2048
MF, KX, QF, KF, VX = 0, 0, 64, 80, 96
vM, vMR, vWO, vIDX, vH1, vH2, vQW, vQR = 104, 105, 106, 107, 108, 109, 110, 111
vMW, vQA, vOA, vRD = 56, 57, 58, 59
TA = 112; vKS = 116; vFW = 117; vFT = 118; vFR = 119; PUB = 120; P0A = 124; P0B = 126
WV = 128
WK, WQ = 0, 128
sSTEP, sPAR, sRD0, sRD1, sSLOT, sSLOTL, sKX, sVX, sPUB, sPROG, sM0K, sM0V, sT0, sT1, sRING_R = 31, 32, 33, 36, 37, 38, 39, 40, 41, 42, 43, 44, 45, 46, 47
sSC = 34
sHI = 48
sTAG = 101
sQM = 94; sMK = 16
sRDB = 47; sONE = 98
sFLG = 50
sPRF = 52
W = f"s[{S_WS}:{S_WS+3}]"


def kv_wait(A, need_sgpr_expr_reg, tag):
    lab = A.newlabel("L_kvw"); done = A.newlabel("L_kvd")
    A(f"s_cmp_ge_u32 s{sPROG}, s{need_sgpr_expr_reg}\ns_cbranch_scc1 {done}")
    A.label(lab)
    A(f"""v_mov_b32 v76, 0
buffer_load_dwordx4 v[72:75], v76, {W}, s{sFLG} offen sc1
s_waitcnt vmcnt(0)""")
    prog_from(A, 72)
    A(f"s_cmp_ge_u32 s{sPROG}, s{need_sgpr_expr_reg}\ns_cbranch_scc1 {done}\ns_sleep 1")
    spin_guard(A)
    A(f"s_branch {lab}")
    A.label(done)

def prog_from(A, b):
    _prog_from(A, b)
    A(f"s_max_u32 s{sPROG}, s{sPROG}, s30")

def _prog_from(A, b):
    A(f"""v_min_u32 v{b}, v{b}, v{b+2}
v_min_u32 v{b+1}, v{b+1}, v{b+3}
v_lshlrev_b32 v{b}, 1, v{b}
v_lshl_or_b32 v{b+1}, v{b+1}, 1, 1
v_min_u32 v{b}, v{b}, v{b+1}
v_readfirstlane_b32 s30, v{b}""")

def dma_k(A):
    return [f"buffer_load_dwordx4 v{vM}, {W}, s{sKX} offen sc1 lds",
            f"buffer_load_dwordx4 v{vM}, {W}, s{sKX} offen offset:1024 sc1 lds"]

def zero_list():
    return [f"v_mov_b64 {vr(b+i,2)}, 0" for b in (80, 64, TA) for i in (0, 2)]

def istamp(A, i, prof, b=14):
    if not prof: return
    A(f"""s_memtime s[52:53]
s_memrealtime s[54:55]
s_lshl_b32 s56, s{S_ROLE}, 2
s_add_u32 s56, s56, s{S_W}
s_lshl_b32 s56, s56, 7
s_add_u32 s56, s56, {WS_PROF + 0x100000 + i*8:#x}
s_waitcnt lgkmcnt(0)
v_mov_b32 v14, s52
v_mov_b32 v15, s54
v_mov_b32 v9, 0
s_mov_b64 exec, 1
buffer_store_dwordx2 v[14:15], v9, {W}, s56 offen
s_mov_b64 exec, -1""")

def SEL0(A):
    A(f"""v_lshrrev_b32 v4, 2, v2      ; g'
v_and_b32 v5, 3, v2           ; r
v_and_b32 v6, 1, v4
v_lshlrev_b32 v6, 4, v6
v_mov_b32 v7, 0x3f80
v_lshlrev_b32 v7, v6, v7      ; value
v_lshrrev_b32 v4, 1, v4
v_lshl_add_u32 v4, v5, 1, v4""")
    for q in range(4):
        A(f"v_cmp_eq_u32 vcc, {q}, v4\nv_cndmask_b32 v{80+q}, 0, v7, vcc")
    A(f"ds_write_b128 v{vM}, v[80:83] offset:{L_SEL - L_MEM}")
    A(f"s_mov_b32 s{sT0}, 2")
    A(f"v_mov_b32 v12, 0\nv_lshlrev_b32 v13, 2, v0\nv_add_u32 v13, {L_PRG}, v13\nds_write_b32 v13, v12\nds_write_b32 v{vFW}, v12\nds_write_b32 v{vFW}, v12 offset:16\nds_write_b32 v{vFW}, v12 offset:32")
    kv_wait(A, sT0, "i")
    A(f"s_mov_b32 m0, s{sM0K}\ns_nop 0")
    for x in dma_k(A): A(x)
    A(f"s_add_u32 s{sKX}, s{sKX}, 0x40000\ns_xor_b32 s{sM0K}, s{sM0K}, {L_STG ^ (L_STG + 8192):#x}")

def init(A, test=False, prof=False, NB=12, DF=0):
    h, w = S_ROLE, S_W
    istamp(A, 0, prof)
    srd(A, 12, P_WQ, 0x400000); srd(A, 16, P_WK, 0x400000); srd(A, 20, P_WV, 0x400000); srd(A, 24, P_MEM0, 8192)
    A(f"""v_and_b32 v2, 15, v0          ; n
v_lshrrev_b32 v3, 4, v0       ; g
v_and_b32 v14, 7, v0
v_lshlrev_b32 v14, 10, v14
v_lshrrev_b32 v15, 1, v3
v_lshl_add_u32 v14, v15, 6, v14
v_and_b32 v15, 1, v3
v_lshl_add_u32 v14, v15, 3, v14
s_lshl_b32 s{sT0}, s{w}, 8
v_lshrrev_b32 v12, 5, v0
v_lshlrev_b32 v12, 3, v12
v_bfe_u32 v13, v0, 4, 1
v_lshl_add_u32 v12, v13, 1, v12
v_bfe_u32 v13, v0, 3, 1
v_add_u32 v12, v13, v12
v_bfe_u32 v13, v0, 2, 1
v_lshl_add_u32 v12, v13, 4, v12
v_lshlrev_b32 v12, 13, v12
v_and_b32 v13, 3, v0
v_lshl_add_u32 v12, v13, 4, v12
s_lshl_b32 s{sT1}, s{h}, 8
s_lshl_b32 s30, s{w}, 6
s_add_u32 s{sT1}, s{sT1}, s30
v_add_u32 v{vQA}, s{sT1}, v12
s_lshl_b32 s55, s{w}, 15""")
    for k in range(8):
        A(f"buffer_load_dwordx2 {vr(88+2*k,2)}, v14, s[24:27], s{sT0} offen offset:{(k>>2)*128 + (k&3)*16}")
    srd(A, 24, P_WO, 0x400000)
    def dma(i):
        A(f"s_add_u32 m0, s55, {(i % 32)*1024}")
        if i < 96:
            mt, u, hf = i >> 5, (i >> 1) & 15, i & 1
            A(f"s_mov_b32 s{sT0}, {(32*u + 4*hf)*8192:#x}")
            A(f"buffer_load_dwordx4 v{vQA}, s[{12+4*mt}:{15+4*mt}], s{sT0} offen lds")
        else:
            fp, jp = (i >> 3) & 3, i & 7
            A(f"s_xor_b32 s{sT0}, s{w}, {fp}\ns_lshl_b32 s{sT0}, s{sT0}, 15\ns_add_u32 s{sT0}, s{sT0}, {(16*(jp >> 2) + 2*(jp & 3))*1024}")
            A(f"buffer_load_dwordx4 v{vOA}, s[24:27], s{sT0} offen lds")
    for i in range(NB): dma(i)
    A(f"""v_lshlrev_b32 v1, 4, v0
v_add_u32 v{vM}, {L_MEM}, v1
s_lshl_b32 s{sT0}, s{w}, 11
v_add_u32 v{vMW}, s{sT0}, v{vM}
s_lshl_b32 s{sT0}, s{w}, 15
v_add_u32 v{vWO}, s{sT0}, v1
v_mov_b32 v12, 0x8888
v_mov_b32 v13, 0xdddd
v_cmp_gt_u32 vcc, 8, v2
v_cndmask_b32 v{vIDX}, v13, v12, vcc
v_lshrrev_b32 v12, 2, v2
v_lshlrev_b32 v12, 1, v12
s_lshl_b32 s{sT0}, s{w}, 3
v_add_u32 v12, s{sT0}, v12
v_add_u32 v13, s{h}, v12
v_and_b32 v13, 31, v13
v_lshlrev_b32 v13, 6, v13
v_lshl_add_u32 v13, v12, 13, v13
v_and_b32 v12, 3, v2
v_lshl_add_u32 v13, v12, 4, v13
v_lshl_add_u32 v{vH1}, v3, 11, v13
; vH2 = h*256 + w*64 + g*16 + (n&3)*4
v_lshlrev_b32 v13, 2, v12
v_lshl_add_u32 v13, v3, 4, v13
s_lshl_b32 s{sT0}, s{h}, 8
s_lshl_b32 s{sT1}, s{w}, 6
s_add_u32 s{sT0}, s{sT0}, s{sT1}
v_add_u32 v{vH2}, s{sT0}, v13
v_mov_b32 v12, 0x7f000000
v_cmp_gt_u32 vcc, 4, v2
v_cndmask_b32 v{vH2}, v12, v{vH2}, vcc
v_and_b32 v12, 7, v2
v_lshlrev_b32 v12, 4, v12
v_lshl_add_u32 v12, v3, 7, v12
v_add_u32 v{vMR}, {L_MEM}, v12
v_mov_b32 v{vKS}, v{vM}
s_lshl_b32 s{sT0}, s{w}, 2
s_add_u32 s{sT0}, s{sT0}, {L_FLG}
v_mov_b32 v{vFW}, s{sT0}
v_mov_b32 v{vFT}, 1
v_and_b32 v12, 3, v0
v_lshlrev_b32 v12, 2, v12
v_add_u32 v{vFR}, {L_FLG}, v12
v_lshrrev_b32 v12, 1, v3
v_lshlrev_b32 v13, 8, v12
v_lshl_add_u32 v13, v2, 4, v13
v_and_b32 v12, 1, v3
v_lshl_add_u32 v13, v12, 3, v13
s_lshl_b32 s{sT0}, s{w}, 9
s_add_u32 s{sT0}, s{sT0}, {L_QIM}
v_add_u32 v{vQW}, s{sT0}, v13
v_lshrrev_b32 v12, 2, v2
v_lshl_add_u32 v12, v3, 2, v12
v_lshlrev_b32 v12, 4, v12
v_and_b32 v13, 1, v2
v_lshl_add_u32 v12, v13, 3, v12
v_add_u32 v{vQR}, {L_QIM}, v12
v_mov_b32 v{P0A+1}, 0
v_mov_b32 v{P0B}, 0
; scalars
s_mov_b32 s{sSC}, {f2u(math.log2(math.e)/math.sqrt(128.0)):#x}
s_mov_b32 s{sSC+1}, s{sSC}
s_mov_b32 s{sHI}, 0
s_mov_b32 s{sHI+1}, -1
s_mov_b32 s{sSTEP}, 0
s_mov_b32 s{sPAR}, {WS_INB:#x}
s_lshl_b32 s{sT0}, s{h}, 13
s_add_u32 s{sRDB}, s{sT0}, {WS_INB - L_MEM:#x}
s_mov_b32 s{sONE}, 0x3f803f80
s_mov_b32 s{sONE+1}, 0x3f803f80
s_lshl_b32 s{sT1}, s{w}, 11
s_add_u32 s{sT0}, s{sT0}, s{sT1}
s_add_u32 s{sKX}, s{sT0}, {WS_KX - L_MEM:#x}
s_add_u32 s{sVX}, s{sT0}, {WS_VX - L_MEM:#x}
s_lshl_b32 s{sT0}, s{h}, 12
s_lshl_b32 s{sT1}, s{w}, 10
s_add_u32 s{sT0}, s{sT0}, s{sT1}
s_add_u32 s{sPUB}, s{sT0}, {WS_KVM - L_MEM:#x}
s_lshl_b32 s{sT0}, s{w}, 11
s_add_u32 s{sM0K}, s{sT0}, {L_STG}
s_lshl_b32 s{sT0}, s{h}, 7
s_add_u32 s{sFLG}, s{sT0}, {WS_FLAG:#x}
s_mov_b32 s{sPROG}, {64 if test else 0}
v_mov_b32 v12, 0
v_mov_b32 v13, 0
v_mov_b32 v14, 0
v_mov_b32 v15, 0
s_mov_b32 s{sTAG}, 1
s_add_u32 s{sT0}, s{sRDB}, 0x40000
s_add_u32 s{sT1}, s{sRDB}, 0x80000
s_add_u32 s30, s{sRDB}, 0xc0000
buffer_store_dwordx4 v[12:15], v{vMW}, {W}, s{sRDB} offen sc1
buffer_store_dwordx4 v[12:15], v{vMW}, {W}, s{sRDB} offen offset:1024 sc1
buffer_store_dwordx4 v[12:15], v{vMW}, {W}, s{sT0} offen sc1
buffer_store_dwordx4 v[12:15], v{vMW}, {W}, s{sT0} offen offset:1024 sc1
buffer_store_dwordx4 v[12:15], v{vMW}, {W}, s{sT1} offen sc1
buffer_store_dwordx4 v[12:15], v{vMW}, {W}, s{sT1} offen offset:1024 sc1
buffer_store_dwordx4 v[12:15], v{vMW}, {W}, s30 offen sc1
buffer_store_dwordx4 v[12:15], v{vMW}, {W}, s30 offen offset:1024 sc1
v_mov_b32 v16, -1
s_mov_b32 s{sQM}, 0x000f000f
s_mov_b32 s{sQM+1}, 0x000f000f
s_mov_b64 exec, s[{sQM}:{sQM+1}]
s_mov_b32 s{sT0}, {WS_RING:#x}
s_mov_b32 s{sT1}, {WS_RING+16384:#x}
buffer_store_dword v16, v{vH2}, {W}, s{sT0} offen sc1
buffer_store_dword v16, v{vH2}, {W}, s{sT1} offen sc1
s_mov_b32 s{sT0}, {WS_RING+8192:#x}
s_mov_b32 s{sT1}, {WS_RING+24576:#x}
buffer_store_dword v16, v{vH2}, {W}, s{sT0} offen sc1
buffer_store_dword v16, v{vH2}, {W}, s{sT1} offen sc1
s_mov_b64 exec, -1
v_mov_b32 v20, -1
v_mov_b32 v21, -1
v_mov_b32 v22, -1
v_mov_b32 v23, -1
s_add_u32 s{sT0}, s{sPUB}, {62*0x20000:#x}
s_add_u32 s{sT1}, s{sT0}, 0x20000
buffer_store_dwordx4 v[20:23], v{vM}, {W}, s{sT0} offen sc1
buffer_store_dwordx4 v[20:23], v{vM}, {W}, s{sT1} offen sc1
s_add_u32 s{sT0}, s{sPUB}, {WS_OX - WS_KVM + 124*0x20000:#x}
s_add_u32 s{sT1}, s{sT0}, 0x20000
buffer_store_dwordx4 v[20:23], v{vM}, {W}, s{sT0} offen sc1
buffer_store_dwordx4 v[20:23], v{vM}, {W}, s{sT1} offen sc1
s_add_u32 s{sT0}, s{sT0}, 0x40000
s_add_u32 s{sT1}, s{sT0}, 0x20000
buffer_store_dwordx4 v[20:23], v{vM}, {W}, s{sT0} offen sc1
buffer_store_dwordx4 v[20:23], v{vM}, {W}, s{sT1} offen sc1
v_lshlrev_b32 v17, 2, v0
s_lshl_b32 s{sT0}, s{w}, 5
s_add_u32 s{sT0}, s{sT0}, s{sFLG}
s_lshl_b32 s{sT1}, s{w}, 7
s_lshl_b32 s30, s{h}, 2
s_add_u32 s{sT1}, s{sT1}, s30
s_add_u32 s{sT1}, s{sT1}, {WS_PO:#x}
s_mov_b64 exec, 0xff
buffer_store_dword v12, v17, {W}, s{sT0} offen sc1
s_mov_b64 exec, 1
buffer_store_dword v12, v17, {W}, s{sT1} offen sc1
buffer_store_dword v12, v17, {W}, s{sT1} offen offset:512 sc1
s_mov_b64 exec, -1
""")
    A(f"""; Wo lane part: (h*128 + 8*(g>>1) + (g&1))*1024 + w*256 + n*16
v_lshrrev_b32 v18, 1, v3
v_lshlrev_b32 v18, 3, v18
v_and_b32 v19, 1, v3
v_add_u32 v18, v18, v19
v_lshlrev_b32 v18, 10, v18
v_lshl_add_u32 v18, v2, 4, v18
s_lshl_b32 s{sT0}, s{h}, 17
s_lshl_b32 s{sT1}, s{w}, 8
s_add_u32 s{sT0}, s{sT0}, s{sT1}
v_add_u32 v{vOA}, s{sT0}, v18
v_lshlrev_b32 v18, 2, v0
v_add_u32 v{vRD}, s55, v18""")
    NST = 21
    if not test:
        ln_task(A)
        NST += 4
    for i in range(NB, 32): dma(i)
    A("v_and_b32 v2, 15, v0\nv_lshrrev_b32 v3, 4, v0")
    if DF: A(f"s_and_b32 s{sT0}, s{h}, 3\ns_cmp_eq_u32 s{sT0}, 1\ns_cselect_b64 vcc, 0, -1")
    for i in range(96):
        A(f"s_waitcnt vmcnt({31 + NST if i < NB else 31})")
        if DF and i > NB:
            lab = A.newlabel("L_df")
            A(f"s_cbranch_vccz {lab}\ns_waitcnt vmcnt({DF-1})")
            A.label(lab)
        if i == NB:
            lab = A.newlabel("L_ci")
            A(f"""s_barrier
s_cmp_lg_u32 s{w}, 0
s_cbranch_scc1 {lab}
s_cmp_lg_u32 s{S_XCC}, 0
s_cselect_b32 s56, 0x10001, 1""")
            dbg_add(A, DBG_CI, val="s56", vt=20)
            A.label(lab)
        mt = i >> 5
        d = (WQ, WK, WV)[mt] + (i & 31)*4
        R = vr if mt == 2 else ar
        A(f"ds_read2st64_b32 {R(d,2)}, v{vRD} offset0:{(i % 32)*4} offset1:{(i % 32)*4+1}")
        A(f"ds_read2st64_b32 {R(d+2,2)}, v{vRD} offset0:{(i % 32)*4+2} offset1:{(i % 32)*4+3}")
        A("s_waitcnt lgkmcnt(0)")
        dma(i + 32)
    istamp(A, 1, prof)
    tl(A, 2, vt=14)
    ex = (1 if prof else 0) + (1 if TL[0] else 0)
    for fp in range(4):
        A(f"s_waitcnt vmcnt({(24 - 8*fp + ex) if fp < 3 else 0})")
        if fp == 3:
            SEL0(A)
        for jp in range(8): A(f"ds_read_b128 {vr(16 + 4*jp, 4)}, v{vWO} offset:{(fp*8 + jp)*1024}")
        A("s_waitcnt lgkmcnt(0)")
        for P in range(4):
            for half in range(2):
                b = 60 + ((P*2+half) % 4)*4
                for q in range(4): A(f"v_mov_b32 v{b+q}, v{16 + (half*4+q)*4 + P}")
                A(f"ds_write_b128 v{vWO}, {vr(b,4)} offset:{(fp*4+P)*2048 + half*1024}")
                if (P*2+half) % 4 == 3: A("s_waitcnt lgkmcnt(0)")
    istamp(A, 2, prof)
    tl(A, 3, vt=14)
    A(f"""v_mov_b32 v6, s{sLO}
v_mov_b32 v7, s{sHI_}
v_cmp_gt_u32 vcc, 8, v2
v_cndmask_b32 v6, v7, v6, vcc""")
    for k in range(8):
        A(f"v_perm_b32 v{16+k}, v{89+2*k}, v{88+2*k}, v6\nv_min_u32 v{16+k}, -2, v{16+k}")
    poll_dbg_ge(A, DBG_CI - (DBG_DONE if test else 0), 32, vt=72, low16=True)
    A(f"""s_lshr_b32 s51, s30, 16
s_waitcnt vmcnt(0) lgkmcnt(0)
s_barrier""")
    for x in zero_list(): A(x)
    for k in range(8): A(f"v_mov_b32 v{72+k}, v{16+k}")
    A(f"s_lshl_b32 s{sT0}, s{w}, 11\ns_add_u32 s{sRDB}, s{sRDB}, s{sT0}")
    istamp(A, 3, prof)
    tl(A, 4, vt=14)
    A(f"s_waitcnt lgkmcnt(0)\ns_cmp_eq_u32 s51, 0\ns_cbranch_scc0 L_go_safe")
    for mode in ("fast", "safe"):
        A.label(f"L_go_{mode}")
        for k in range(3): A(f"s_cmp_eq_u32 s{w}, {k}\ns_cbranch_scc1 L_enter_{mode}{k}")
        A(f"s_branch L_enter_{mode}3")

def interleave(A, main, fill, per=1, start=0, every=1):
    fill = list(fill)
    for i, m in enumerate(main):
        A(m)
        if i >= start and (i - start) % every == 0:
            for _ in range(per):
                if fill: A(fill.pop(0))
    return fill

def loop(A, mode, sc, w, prof=False, D1=0, D2=0, PTS=None, RT=False, PUBAT='max', E1=64, E2=128, SMV=0, F1=160, NEX=2, NMF=5, NRD=3, LOOKB=1, NOBAR=0, SA=1, PUBS=1):
    PUBW = [(0, 0, 0, 0), (0, 1, 2, 3), (3, 3, 3, 3)][PUBS]
    tag = f"{mode}{w}"
    pts = PTS if PTS else ["enter", "kend", "send", "oex", "h1", "p1", "h2"]
    def mark(name):
        A.lines.append(f"; MARK {name}")
        if prof and name in pts:
            i = pts.index(name)
            r = (sPRF + 2*i) if i < 4 else (96 if i == 6 else 62 if i == 5 else 12)
            A(f"s_mem{'real' if RT else ''}time s[{r}:{r+1}]")
    def delay(n):
        while n > 0:
            k = min(16, (n+3)//4); A(f"s_nop {k-1}"); n -= 4*k
    A(".p2align 6")
    A.label(f"L_loop_{tag}")
    A(f"""s_add_u32 s{sT1}, s{sSTEP}, 2
s_and_b32 s{sT1}, s{sT1}, 3
s_lshl_b32 s{sT1}, s{sT1}, 13
s_add_u32 s{sT1}, s{sT1}, {WS_RING:#x}
buffer_store_dword v30, v{vH2}, {W}, s{sT1} offen {sc}
s_mov_b32 m0, s{sM0K}""")
    delay(D2)
    def ld2(b): return f"""buffer_load_dwordx4 {vr(b,4)}, v{vM}, {W}, s{sSLOTL} offen sc1
buffer_load_dwordx4 {vr(b+4,4)}, v{vM}, {W}, s{sSLOTL} offen offset:1024 sc1"""
    def chk2(b): return f"""v_max3_u32 v26, v{b}, v{b+1}, v{b+2}
v_max3_u32 v27, v{b+4}, v{b+5}, v{b+6}
v_max_u32 v26, v26, v{b+3}
v_max_u32 v27, v27, v{b+7}
v_cmp_eq_u32 vcc, -1, v26
v_cmp_eq_u32 s[{sMK}:{sMK+1}], -1, v27
s_or_b64 s[{sMK+2}:{sMK+3}], vcc, s[{sMK}:{sMK+1}]"""
    def wr2(b): return f"""ds_write_b128 v{vM}, {vr(b,4)} offset:{w*2048}
ds_write_b128 v{vM}, {vr(b+4,4)} offset:{w*2048+1024}"""
    def mld(b, so): return f"""s_or_b64 exec, vcc, 1
buffer_load_dwordx4 {vr(b,4)}, v{vM}, {W}, s{so} offen sc1
s_or_b64 exec, s[{sMK}:{sMK+1}], 1
buffer_load_dwordx4 {vr(b+4,4)}, v{vM}, {W}, s{so} offen offset:1024 sc1
s_mov_b64 exec, -1"""
    A(ld2(72))
    delay(E2)
    A(ld2(88))
    A("s_waitcnt vmcnt(3)")
    A(wr2(72).split("\n")[0])
    A("s_waitcnt vmcnt(2)")
    mark("enter")
    A(wr2(72).split("\n")[1])
    A(chk2(72))
    A(f"s_cbranch_scc1 L_p2b_{tag}")
    A.label(f"L_go_{tag}")
    A("s_waitcnt lgkmcnt(0)")
    mark("b0a")
    A("s_barrier")
    mark("b0b")
    mfr = [f"ds_read_b128 {vr(MF+4*u,4)}, v{vMR} offset:{u*512}" for u in range(16)]
    for u in range(NMF): A(mfr[u])
    A(f"s_cmp_eq_u32 s{sSTEP}, 63\ns_cbranch_scc1 L_chain_end")
    def proj(acc, kind, base):
        return [f"v_smfmac_f32_16x16x64_bf16 {vr(acc,4)}, {vr(MF+4*u,4)}, {(ar if kind == 'a' else vr)(base+8*u,8)}, v{vIDX}" for u in range(16)]
    qp, kp, vp = proj(64, "a", WQ), proj(80, "a", WK), proj(TA, "v", WV)
    for u in range(16):
        A(f"s_waitcnt lgkmcnt({min(NMF-1, 15-u)})"); A(qp[u])
        if u + NMF < 16: A(mfr[u+NMF])
    mark("qend")
    qtr = []; ktr = []
    for j in range(4):
        qtr += [f"ds_read_b64_tr_b16 {vr(QF+4*j,2)}, v{vQR} offset:{j*512}", f"ds_read_b64_tr_b16 {vr(QF+4*j+2,2)}, v{vQR} offset:{j*512+256}"]
        ktr += [f"ds_read_b64_tr_b16 {vr(KF+4*j,2)}, v{vQR} offset:{2048+j*512}", f"ds_read_b64_tr_b16 {vr(KF+4*j+2,2)}, v{vQR} offset:{2048+j*512+256}"]
    dk = dma_k(A)
    A(kp[0]); A(f"buffer_load_dwordx4 {vr(VX,4)}, v{vM}, {W}, s{sVX} offen sc1")
    A(kp[1])
    A(kp[2]); A("v_cvt_pk_bf16_f32 v68, v64, v65")
    def fw(kind): return f"ds_write_b32 v{vFW}, v{vFT} offset:{16*kind}"
    def fr(kind, d): return f"ds_read_b32 v{d}, v{vFR} offset:{16*kind}"
    def fc(d, lab): return f"v_cmp_ne_u32 vcc, v{d}, v{vFT}\ns_cbranch_vccnz {lab}"
    A(kp[3]); A(f"v_cvt_pk_bf16_f32 v69, v66, v67\nds_write_b64 v{vQW}, v[68:69]")
    if NOBAR: A(fw(0))
    A(kp[4]); A(f"buffer_load_dwordx4 {vr(VX+4,4)}, v{vM}, {W}, s{sVX} offen offset:1024 sc1")
    A(kp[5]); A(kp[6]); A(dk[0]); A(kp[7]); A(kp[8]); A(dk[1])
    if NOBAR:
        A("s_waitcnt vmcnt(4)")
        A(fr(0, 84))
    else:
        A("s_waitcnt vmcnt(4) lgkmcnt(0)")
        mark("b1a")
        A("s_barrier")
        mark("b1b")
    for i in range(4): A(kp[9+i]); A(qtr[2*i]); A(qtr[2*i+1])
    A(kp[13]); A(f"s_add_u32 s{sKX}, s{sKX}, 0x40000\ns_add_u32 s{sVX}, s{sVX}, 0x40000\ns_xor_b32 s{sM0K}, s{sM0K}, {L_STG ^ (L_STG + 8192):#x}")
    if w == 3:
        A(f"v_mov_b32 v88, s{sSTEP}"); A(kp[14]); A("v_mov_b32 v89, 32"); A(kp[15])
        A(f"s_mov_b64 exec, 1\nbuffer_store_dword v88, v89, {W}, s{sFLG} offen sc1\ns_mov_b64 exec, -1")
    elif w == 1:
        A(kp[14])
        A(f"s_cmp_lt_u32 s{sPROG}, 64\ns_cbranch_scc1 L_prf_{tag}")
        A.label(f"L_prfd_{tag}")
        A(kp[15])
    else:
        A(kp[14]); A(kp[15])
    mark("kend")
    seq = [(P, 0) for P in range(4)] + [(P, f) for P in range(4) for f in (1, 2, 3)]
    buf = [0, 8, 16, 24, 64, 72, 80, 88, 56, 96, 0, 8, 16, 24, 64, 72]
    def wo_rd(q):
        P, f = seq[q]
        return [f"ds_read_b128 {vr(buf[q]+4*hf,4)}, v{vWO} offset:{(f*4+P)*2048+hf*1024}" for hf in range(2)]
    B = 32
    S1, S2, S0 = B, B+4, B+8
    def smm(j, which):
        c = lambda b: "0" if j == 0 else vr(b, 4)
        D, Aop = {1: (S1, KX+4*j), 2: (S2, KX+16+4*j), 0: (S0, KF+4*j)}[which]
        return f"v_mfma_f32_16x16x32_bf16 {vr(D,4)}, {vr(Aop,4)}, {vr(QF+4*j,4)}, {c(D)}"
    kxr = [f"ds_read_b128 {vr(KX+4*i,4)}, v{vKS} offset:{L_STG-L_MEM+i*1024}" for i in range(8)]
    A(vp[0])
    if NOBAR:
        A("s_waitcnt lgkmcnt(8)"); A(fc(84, f"L_rq_{tag}")); A.label(f"L_rqd_{tag}")
    A(vp[1])
    A(vp[2]); A(f"v_cvt_pk_bf16_f32 v{PUB}, v80, v81")
    A(vp[3]); A(f"v_cvt_pk_bf16_f32 v{PUB+1}, v82, v83\nds_write_b64 v{vQW}, {vr(PUB,2)} offset:{L_KIM-L_QIM}")
    if NOBAR: A(fw(1))
    for i in range(4): A(vp[4+i]); A(kxr[i])
    A(f"v_min_u32 v{PUB}, -2, v{PUB}")
    if not NOBAR:
        A("s_waitcnt lgkmcnt(4)")
        mark("b2a")
        A("s_barrier")
        mark("b2b")
    for i in range(4): A(vp[8+i]); A(kxr[4+i])
    if NOBAR: A(fr(1, P0A))
    for i in range(4): A(vp[12+i]); A(ktr[2*i]); A(ktr[2*i+1])
    mark("vend")
    pre = []
    for q in (8, 0, 1, 2, 3, 4, 5, 6, 7): pre += wo_rd(q)
    P = lambda: pre.pop(0)
    pub = f"buffer_store_dwordx4 {vr(PUB,4)}, v{vM}, {W}, s{sPUB} offen sc1"
    nb = 1 if NOBAR else 0
    A(f"s_waitcnt lgkmcnt({12+nb})")
    A(smm(0, 1)); A(P()); A(f"v_xor_b32 v{vKS}, 0x2000, v{vKS}")
    A(smm(1, 1)); A(P()); A(f"v_mov_b64 {vr(B+16,2)}, s[{sONE}:{sONE+1}]\nv_mov_b64 {vr(B+18,2)}, s[{sONE}:{sONE+1}]")
    A(smm(2, 1)); A(f"v_cvt_pk_bf16_f32 v{PUB+2}, v{TA}, v{TA+1}\nv_cvt_pk_bf16_f32 v{PUB+3}, v{TA+2}, v{TA+3}")
    A(smm(3, 1))
    A("s_waitcnt lgkmcnt(10)")
    A(smm(0, 2)); A(f"v_permlane32_swap_b32 v{PUB+2}, v{PUB+3}")
    if NOBAR: A(fc(P0A, f"L_rk_{tag}")); A.label(f"L_rkd_{tag}")
    A(smm(1, 2)); A(P())
    if PUBW[w] == 0: A(pub)
    A(smm(2, 2)); A(P())
    A(smm(3, 2)); A(P())
    if PUBW[w] == 1: A(pub)
    A("s_waitcnt lgkmcnt(5)")
    A(smm(0, 0)); A(P()); A(f"v_max3_f32 v{B+12}, v{B}, v{B+1}, v{B+2}")
    A(smm(1, 0)); A(P())
    if PUBW[w] == 2: A(pub)
    A(smm(2, 0)); A(P()); A(f"v_max3_f32 v{B+13}, v{B+3}, v{B+4}, v{B+5}\nv_max3_f32 v{B+12}, v{B+12}, v{B+6}, v{B+7}")
    A(smm(3, 0)); A(f"v_max_f32 v{B+12}, v{B+12}, v{B+13}\nv_mov_b32 v{B+13}, v{B+12}")
    A(P()); A(P())
    A(f"v_permlane32_swap_b32 v{B+12}, v{B+13}")
    if PUBW[w] == 3: A(pub)
    mark("send")
    A(f"""v_max3_f32 v{B+14}, v{B+8}, v{B+9}, v{B+10}
v_max3_f32 v{B+12}, v{B+12}, v{B+13}, v{B+11}
v_max_f32 v{B+12}, v{B+12}, v{B+14}
v_mov_b32 v{B+13}, v{B+12}
v_cndmask_b32 v{B+8}, v{B+8}, v{B+10}, s[{sHI}:{sHI+1}]
v_cndmask_b32 v{B+9}, v{B+9}, v{B+11}, s[{sHI}:{sHI+1}]
v_permlane16_swap_b32 v{B+12}, v{B+13}
v_max_f32 v{B+12}, v{B+12}, v{B+13}
v_mul_f32 v{B+12}, s{sSC}, v{B+12}""")
    mark("max")
    for i in range(0, 10, 2):
        A(f"v_pk_fma_f32 {vr(B+i,2)}, {vr(B+i,2)}, s[{sSC}:{sSC+1}], {vr(B+12,2)} op_sel_hi:[1,1,0] neg_lo:[0,0,1] neg_hi:[0,0,1]")
    for i in range(8): A(f"v_exp_f32 v{B+i}, v{B+i}")
    for i in range(4): A(f"v_cvt_pk_bf16_f32 v{B+12+i}, v{B+2*i}, v{B+2*i+1}")
    A(f"v_exp_f32 v{B+8}, v{B+8}\nv_exp_f32 v{B+9}, v{B+9}\ns_waitcnt vmcnt(3)")
    O0, O1, PT, ON, LS = B, B+4, B+12, B+16, B+20
    mark("exp")
    A(f"v_mfma_f32_16x16x32_bf16 {vr(LS,4)}, {vr(ON,4)}, {vr(PT,4)}, 0")
    A(P()); A(f"v_cvt_pk_bf16_f32 v{P0A}, v{B+8}, v{B+9}\nv_cvt_pk_bf16_f32 v{P0B+1}, v{B+8}, v{B+9}")
    A(f"v_mfma_f32_16x16x32_bf16 {vr(O0,4)}, {vr(VX,4)}, {vr(PT,4)}, 0")
    A(P()); A(f"v_mov_b64 {vr(B+8,2)}, 0\nv_mov_b64 {vr(B+10,2)}, 0")
    A(f"v_mfma_f32_16x16x32_bf16 {vr(O1,4)}, {vr(VX+4,4)}, {vr(PT,4)}, 0")
    A(P()); A(f"v_mov_b64 {vr(B+12,2)}, 0\nv_mov_b64 {vr(B+14,2)}, 0")
    A(f"v_mfma_f32_16x16x16_bf16 {vr(LS,4)}, {vr(ON,2)}, {vr(P0A,2)}, {vr(LS,4)}")
    A(P())
    A(f"v_mfma_f32_16x16x16_bf16 {vr(O0,4)}, {vr(PUB+2,2)}, {vr(P0A,2)}, {vr(O0,4)}")
    A(P())
    A(f"v_mfma_f32_16x16x16_bf16 {vr(O1,4)}, {vr(PUB+2,2)}, {vr(P0B,2)}, {vr(O1,4)}")
    mark("pv")
    A(P())
    A(f"v_rcp_f32 v{LS}, v{LS}")
    for i in range(0, 8, 2):
        A(f"v_pk_mul_f32 {vr(O0+i,2)}, {vr(O0+i,2)}, {vr(LS,2)} op_sel_hi:[1,0]")
    for i in range(4):
        A(f"v_cvt_pk_bf16_f32 v{ON+i}, v{O0+2*i}, v{O0+2*i+1}")
    A(f"ds_write_b128 v{vMR}, {vr(ON,4)} offset:{L_OEX-L_MEM+w*512}")
    if NOBAR > 1: A(fw(2))
    for i in range(0, 8, 2): A(f"v_mov_b64 {vr(B+i,2)}, 0")
    mark("oex")
    OF = [ON, TA, PUB, LS]
    def cmm(q):
        P_, f = seq[q]
        return f"v_smfmac_f32_16x16x64_bf16 {vr(B+4*P_,4)}, {vr(OF[f],4)}, {vr(buf[q],8)}, v{vIDX}"
    A(f"s_waitcnt lgkmcnt({8 if NOBAR > 1 else 7})")
    r9 = wo_rd(9)
    A(cmm(2)); A(P()); A(cmm(3)); A(P()); A(cmm(0)); A(r9[0]); A(cmm(1)); A(r9[1])
    assert not pre
    mark("own")
    ofr = [f"ds_read_b128 {vr(OF[f],4)}, v{vMR} offset:{L_OEX-L_MEM+(w ^ f)*512}" for f in (1, 2, 3)]
    if NOBAR > 1:
        A(fr(2, P0A))
    else:
        A("s_waitcnt lgkmcnt(4)")
        mark("b3a")
        A("s_barrier")
    mark("b3b")
    for x in ofr: A(x)
    rd = []
    for q in (10, 11, 12, 13, 14, 15): rd += wo_rd(q)
    for r in rd[:NRD]: A(r)
    k = NRD
    if NOBAR > 1:
        A(f"s_waitcnt lgkmcnt({3+k})"); A(fc(P0A, f"L_ro_{tag}")); A.label(f"L_rod_{tag}")
    A(f"s_waitcnt lgkmcnt({2+k})"); A(cmm(4)); A(rd[k]); A(rd[k+1]); k += 2
    A(f"s_waitcnt lgkmcnt({1+k})"); A(cmm(5)); A(rd[k]); k += 1
    A(f"s_waitcnt lgkmcnt({k})"); A(cmm(6)); A(rd[k]); k += 1
    mark("c6")
    for q in (7, 8, 9):
        A(cmm(q))
        if k < 12: A(rd[k]); k += 1
    A(f"v_cvt_pk_bf16_f32 v{ON}, v{B}, v{B+1}")
    A(f"s_waitcnt lgkmcnt({k-2})"); A(cmm(10))
    while k < 11: A(rd[k]); k += 1
    A(f"v_cvt_pk_bf16_f32 v{ON+1}, v{B+2}, v{B+3}")
    A(f"s_waitcnt lgkmcnt({k-4})"); A(cmm(11))
    while k < 12: A(rd[k]); k += 1
    A(f"v_and_or_b32 v{ON}, v{ON}, -2, s{sTAG}")
    A("s_waitcnt lgkmcnt(6)"); A(cmm(12)); A(f"v_cvt_pk_bf16_f32 v{ON+2}, v{B+4}, v{B+5}\nv_cvt_pk_bf16_f32 v{ON+3}, v{B+6}, v{B+7}")
    sta = f"buffer_store_dwordx4 {vr(ON,4)}, v{vH1}, {W}, s{sPAR} offen {sc}"
    sa = SA if SA < 4 else w
    if sa == 0: A(sta)
    A("s_waitcnt lgkmcnt(4)"); A(cmm(13))
    if sa == 1: A(sta)
    A("s_waitcnt lgkmcnt(2)"); A(cmm(14))
    if sa == 2: A(sta)
    A("s_waitcnt lgkmcnt(0)"); A(cmm(15))
    if sa == 3: A(sta)
    A(f"v_cvt_pk_bf16_f32 v56, v{B+8}, v{B+9}\nv_cvt_pk_bf16_f32 v57, v{B+10}, v{B+11}\nv_and_or_b32 v56, v56, -2, s{sTAG}")
    A(f"""s_add_u32 s{sRD1}, s{sPAR}, 8192
s_and_b32 s{sT0}, s{sSTEP}, 3
s_lshl_b32 s{sT0}, s{sT0}, 18
s_add_u32 s{sRD0}, s{sT0}, s{sRDB}
s_add_u32 s{sSTEP}, s{sSTEP}, 1""")
    A(f"v_cvt_pk_bf16_f32 v58, v{B+12}, v{B+13}\nv_cvt_pk_bf16_f32 v59, v{B+14}, v{B+15}")
    A(f"buffer_store_dwordx4 v[56:59], v{vH1}, {W}, s{sRD1} offen {sc}")
    mark("h1")
    A(f"ds_read_b128 v[88:91], v{vM} offset:{L_SEL-L_MEM}")
    A(f"""s_add_u32 s{sPUB}, s{sPUB}, 0x20000
s_and_b32 s{sT0}, s{sSTEP}, 3
s_lshl_b32 s{sT1}, s{sT0}, 13
s_add_u32 s{sSLOT}, s{sT1}, {WS_RING:#x}
s_add_u32 s{sSLOTL}, s{sT1}, {WS_RING - L_MEM + w*2048:#x}
s_lshl_b32 s{sT0}, s{sT0}, 18
s_add_u32 s{sPAR}, s{sT0}, {WS_INB:#x}""")
    if prof:
        A(f"""s_waitcnt lgkmcnt(0)
s_lshl_b32 s30, s{S_ROLE}, 2
s_add_u32 s30, s30, {w}
s_lshl_b32 s30, s30, 6
s_add_u32 s30, s30, s{sSTEP}
s_lshl_b32 s30, s30, 5
s_add_u32 s30, s30, {WS_PROF:#x}
v_mov_b32 v8, 0""")
        for i in range(7):
            r = (sPRF + 2*i) if i < 4 else (96 if i == 6 else 62 if i == 5 else 12)
            A(f"v_mov_b32 v{0+i}, s{r}")
        A(f"v_mov_b32 v7, s{S_TMO}")
        A(f"s_mov_b64 exec, 1\nbuffer_store_dwordx4 v[0:3], v8, {W}, s30 offen\nbuffer_store_dwordx4 v[4:7], v8, {W}, s30 offen offset:16\ns_mov_b64 exec, -1")
        D1 = max(0, D1 - 96)
    delay(D1)
    mark("p1")
    def ld1(b): return f"""buffer_load_dwordx4 {vr(b,4)}, v{vM}, {W}, s{sRD0} offen sc1
buffer_load_dwordx4 {vr(b+4,4)}, v{vM}, {W}, s{sRD0} offen offset:1024 sc1"""
    def red1(n, b): return f"""s_waitcnt vmcnt({n+1})
v_mfma_f32_16x16x32_bf16 v[92:95], v[88:91], {vr(b,4)}, 0
v_and_b32 v28, 1, v{b}
s_waitcnt vmcnt({n})
v_mfma_f32_16x16x32_bf16 v[92:95], v[88:91], {vr(b+4,4)}, v[92:95]
v_and_b32 v29, 1, v{b+4}
v_cmp_ne_u32 vcc, s{sTAG}, v28
v_cmp_ne_u32 s[{sMK}:{sMK+1}], s{sTAG}, v29
s_or_b64 s[{sMK+2}:{sMK+3}], vcc, s[{sMK}:{sMK+1}]"""
    zl = zero_list() + ["v_mov_b32 v30, -1", f"v_add_u32 v{vFT}, 1, v{vFT}"]
    def spread(items, cycles):
        gap = max(0, cycles // max(1, len(items)) - 4)
        for z in items:
            A(z); delay(gap)
    A(ld1(0))
    spread(zl[:2], E1)
    if LOOKB: A(ld1(8))
    spread(zl[2:], F1)
    A("s_waitcnt lgkmcnt(0)")
    A(red1(2 if LOOKB else 0, 0))
    A(f"s_cbranch_scc1 L_p1b_{tag}")
    A.label(f"L_p1ok_{tag}")
    A(f"""v_add_f32_dpp v92, v92, v92 row_ror:4 row_mask:0xf bank_mask:0xf
v_add_f32_dpp v93, v93, v93 row_ror:4 row_mask:0xf bank_mask:0xf
v_add_f32_dpp v92, v92, v92 row_ror:8 row_mask:0xf bank_mask:0xf
v_add_f32_dpp v93, v93, v93 row_ror:8 row_mask:0xf bank_mask:0xf
v_cvt_pk_bf16_f32 v92, v92, v93
v_min_u32 v92, -2, v92
buffer_store_dword v92, v{vH2}, {W}, s{sSLOT} offen {sc}
s_bfe_u32 s{sTAG}, s{sSTEP}, 0x10002
s_xor_b32 s{sTAG}, s{sTAG}, 1""")
    mark("h2")
    A(f"s_cmp_lt_u32 s{sPROG}, 64\ns_cbranch_scc1 L_prg_{tag}")
    A.label(f"L_prd_{tag}")
    A(f"""s_add_u32 s{sT0}, s{sSTEP}, 2
s_min_u32 s{sT0}, s{sT0}, 64
s_cmp_lt_u32 s{sPROG}, s{sT0}
s_cbranch_scc1 L_kvw_{tag}""")
    A.label(f"L_kvd_{tag}")
    A(f"s_branch L_loop_{tag}")
    A.label(f"L_p1b_{tag}")
    if prof: A(f"s_add_u32 s{S_TMO}, s{S_TMO}, 0x1000000")
    if not LOOKB: A(ld1(8))
    A.label(f"L_p1r_{tag}")
    A(mld(0, sRD0))
    A(red1(2, 8))
    A(f"s_cbranch_scc0 L_p1k_{tag}")
    A(mld(8, sRD0))
    spin_guard(A)
    A(red1(2, 0))
    A(f"s_cbranch_scc1 L_p1r_{tag}")
    A.label(f"L_p1k_{tag}")
    A(f"s_nop 2\ns_branch L_p1ok_{tag}")
    A.label(f"L_p2b_{tag}")
    if prof: A(f"s_add_u32 s{S_TMO}, s{S_TMO}, 0x10000")
    A.label(f"L_p2r_{tag}")
    A(mld(72, sSLOTL))
    A("s_waitcnt vmcnt(2)")
    A(wr2(88)); A(chk2(88))
    A(f"s_cbranch_scc0 L_go_{tag}")
    A(mld(88, sSLOTL))
    spin_guard(A)
    if prof: A(f"s_add_u32 s{S_TMO}, s{S_TMO}, 0xff")
    A("s_waitcnt vmcnt(2)")
    A(wr2(72)); A(chk2(72))
    A(f"s_cbranch_scc1 L_p2r_{tag}\ns_branch L_go_{tag}")
    if NOBAR:
        for nm, kind, d, rds in (("rq", 0, 84, qtr), ("rk", 1, P0A, ktr)) + ((("ro", 2, P0A, ofr),) if NOBAR > 1 else ()):
            A.label(f"L_{nm}_{tag}")
            spin_guard(A)
            A(fr(kind, d))
            for x in rds: A(x)
            A("s_waitcnt lgkmcnt(0)")
            A(fc(d, f"L_{nm}_{tag}"))
            A(f"s_branch L_{nm}d_{tag}")
    if w == 1:
        A.label(f"L_prf_{tag}")
        A(f"""v_mov_b32 v89, 0
s_mov_b32 m0, {L_PRG}
s_mov_b64 exec, 1
buffer_load_dwordx4 v89, {W}, s{sFLG} offen sc1 lds
s_mov_b64 exec, -1
s_branch L_prfd_{tag}""")
    A.label(f"L_enter_{tag}")
    A(wr2(72))
    A(f"s_mov_b32 m0, s{sM0K}\ns_branch L_go_{tag}")
    A.label(f"L_kvw_{tag}")
    kv_wait(A, sT0, tag)
    A(f"s_branch L_kvd_{tag}")
    A.label(f"L_prg_{tag}")
    A(f"v_mov_b32 v92, {L_PRG}\nds_read_b128 v[92:95], v92\ns_waitcnt lgkmcnt(0)")
    prog_from(A, 92)
    A(f"s_branch L_prd_{tag}")

def end(A, prof=False, NMF=5):
    A.label("L_chain_end")
    for u in range(NMF, 16): A(f"ds_read_b128 {vr(MF+4*u,4)}, v{vMR} offset:{u*512}")
    for u in range(16):
        A(f"s_waitcnt lgkmcnt({15-u})")
        A(f"v_smfmac_f32_16x16x64_bf16 v[80:83], {vr(MF+4*u,4)}, {ar(WK+8*u,8)}, v{vIDX}")
        A(f"v_smfmac_f32_16x16x64_bf16 {vr(TA,4)}, {vr(MF+4*u,4)}, {vr(WV+8*u,8)}, v{vIDX}")
    for b, d in ((80, PUB), (TA, PUB+2)):
        A(f"v_cvt_pk_bf16_f32 v{d}, v{b}, v{b+1}\nv_cvt_pk_bf16_f32 v{d+1}, v{b+2}, v{b+3}")
    A(f"""v_min_u32 v{PUB}, -2, v{PUB}
v_permlane32_swap_b32 v{PUB+2}, v{PUB+3}
buffer_store_dwordx4 {vr(PUB,4)}, v{vM}, {W}, s{sPUB} offen sc1""")
    istamp(A, 4, prof)
    tl(A, 5, vt=14)
    A("s_waitcnt vmcnt(0)\ns_endpgm")

def emit(A, test=False, prof=False, D1=0, D2=0, PTS=None, ends=False, **kw):
    init(A, test, prof or ends, kw.pop('NB', 12), kw.pop('DF', 0))
    for mode, sc in (("fast", ""), ("safe", "sc1")):
        for w in range(4): loop(A, mode, sc, w, prof, D1, D2, PTS, **kw)
    end(A, prof or ends, kw.get('NMF', 5))
```

```python
from common import *
import math, struct
W = f"s[{S_WS}:{S_WS+3}]"
sWI = 31
vLN = 255

def setup(A):
    A(f"""s_sub_u32 s{sWI}, s{S_ROLE}, 32
v_mov_b32 v{vLN}, v0""")

def arrive(A, off, target, wait=True, part=0):
    lab = A.newlabel("L_arr")
    if part in (0, 1):
        if wait: A("s_waitcnt vmcnt(0)")
        A("s_barrier")
    A(f"s_cmp_lg_u32 s{S_W}, 0\ns_cbranch_scc1 {lab}")
    if part in (0, 1): arrive_begin(A, off, 1, 250)
    if part in (0, 2):
        A("s_waitcnt vmcnt(0)")
        arrive_end(A, off, 1, target, 250, then_wait=(DBG_CI, 32) if off == DBG_LN else None)
    A.label(lab)

def wg_wait_dbg(A, off, target, sleep=4):
    lab = A.newlabel("L_wgw")
    A(f"s_cmp_lg_u32 s{S_W}, 0\ns_cbranch_scc1 {lab}")
    poll_dbg_ge(A, off, target, vt=250, st=30, sleep=sleep, low16=True)
    A.label(lab)
    A("s_barrier")

def load_pairs(A, jobs, vaddr, depth, land, wait_extra=0):
    n = len(jobs)
    def issue(i):
        sb, sa, sbb, ia, ib, _, _ = jobs[i]; r = land + 2*(i % depth)
        A(f"s_mov_b32 s36, {sa:#x}\nbuffer_load_dword v{r}, v{vaddr}, s[{sb}:{sb+3}], s36 offen offset:{ia}")
        if sbb != sa: A(f"s_mov_b32 s37, {sbb:#x}")
        A(f"buffer_load_dword v{r+1}, v{vaddr}, s[{sb}:{sb+3}], s{37 if sbb != sa else 36} offen offset:{ib}")
    def retire(i):
        _, _, _, _, _, d0, d1 = jobs[i]; r = land + 2*(i % depth)
        for d, sel, t in ((d0, sLO, land-2), (d1, sHI_, land-1)):
            if d[0] == "v": A(f"v_perm_b32 v{d[1]}, v{r+1}, v{r}, s{sel}")
            else: A(f"v_perm_b32 v{t}, v{r+1}, v{r}, s{sel}\nv_accvgpr_write_b32 a{d[1]}, v{t}")
    return issue, retire, n

def qkv_weights_issue(A):
    A(f"""s_lshr_b32 s40, s{sWI}, 6          ; matrix 0 K, 1 V, 2 Q
s_bfe_u32 s41, s{sWI}, 0x50001       ; head
s_and_b32 s42, s{sWI}, 1             ; parity
s_cmp_eq_u32 s40, 0
s_cselect_b32 s16, s{P_WK}, s{P_WV}
s_cselect_b32 s17, s{P_WK+1}, s{P_WV+1}
s_cmp_eq_u32 s40, 2
s_cselect_b32 s16, s{P_WQ}, s16
s_cselect_b32 s17, s{P_WQ+1}, s17
s_mov_b32 s18, 0x400000
s_mov_b32 s19, 0x20000
v_lshrrev_b32 v60, 4, v{vLN}
v_lshlrev_b32 v60, 16, v60           ; 8g rows
v_and_b32 v61, 15, v{vLN}
v_lshl_add_u32 v60, v61, 2, v60
s_lshl_b32 s36, s41, 8
s_lshl_b32 s37, s{S_W}, 6
s_add_u32 s36, s36, s37
v_add_u32 v60, s36, v60""")
    jobs = []
    for ks in range(16):
        for q in range(4):
            row = 32*ks + 2*q
            jobs.append((16, row*8192, (row+1)*8192, 0, 0, ("a", (ks*2)*4 + q), ("a", (ks*2+1)*4 + q)))
    issue, retire, n = load_pairs(A, jobs, 60, 28, 64)
    for i in range(28): issue(i)
    def finish(extra, hook):
        for i in range(n):
            A(f"s_waitcnt vmcnt({54 + extra if i < 28 else 2*min(27, n-1-i)})")
            if i == 28: hook()
            retire(i)
            if i + 28 < n: issue(i + 28)
    return finish

def qkv(A):
    A.comment("QKV projection: weights in a[0:127]")
    sSEG, sI, sXO, sOUT, sFL, sM0 = 43, 44, 45, 46, 47, 48
    A(f"""v_lshlrev_b32 v1, 4, v{vLN}
s_lshl_b32 s36, s{S_W}, 13
v_add_u32 v2, s36, v1
s_lshl_b32 s{sXO}, s42, 15
s_add_u32 s{sXO}, s{sXO}, {WS_XN:#x}
s_lshl_b32 s{sM0}, s{S_W}, 13
s_mov_b32 s36, {WS_VX:#x}
s_cmp_eq_u32 s40, 0
s_cselect_b32 s36, {WS_KX:#x}, s36
s_cmp_eq_u32 s40, 2
s_cselect_b32 s36, {WS_QX:#x}, s36
s_lshl_b32 s37, s42, 5
s_add_u32 s37, s37, s41
s_lshl_b32 s37, s37, 13
s_add_u32 s{sOUT}, s36, s37
s_cmp_eq_u32 s40, 1
s_cselect_b32 s36, 11, 10
s_lshl_b32 s36, s{S_W}, s36
s_add_u32 s{sOUT}, s{sOUT}, s36
s_lshl_b32 s36, s41, 7
s_lshl_b32 s37, s40, 3
s_add_u32 s36, s36, s37
s_lshl_b32 s37, s42, 2
s_add_u32 s36, s36, s37
s_add_u32 s{sFL}, s36, {WS_FLAG:#x}
s_mov_b32 s{sI}, 0
v_mov_b32 v3, 0""")
    def dma(slot_expr_sgpr):
        A(f"s_add_u32 m0, s{slot_expr_sgpr}, s{sM0}")
        for k in range(4): A(f"buffer_load_dwordx4 v2, {W}, s{sXO} offen offset:{k*1024} sc1 lds")
        A(f"s_add_u32 m0, m0, 4096\ns_add_u32 s36, s{sXO}, 4096")
        for k in range(4): A(f"buffer_load_dwordx4 v2, {W}, s36 offen offset:{k*1024} sc1 lds")
        A(f"s_add_u32 s{sXO}, s{sXO}, 0x10000")
    for k in range(3):
        A(f"s_mov_b32 s49, {k*32768}"); dma(49)
    for var in ("kq", "v"):
        if var == "kq": A("s_cmp_eq_u32 s40, 1\ns_cbranch_scc1 L_qkv_v")
        A.label(f"L_qkv_{var}")
        A(f"""s_waitcnt vmcnt(10)
s_barrier
s_and_b32 s49, s{sI}, 3
s_lshl_b32 s50, s49, 15
v_add_u32 v5, s50, v1
s_add_u32 s49, s49, 3
s_and_b32 s49, s49, 3
s_lshl_b32 s49, s49, 15""")
        for k in range(4): A(f"ds_read_b128 {vr(8+4*k,4)}, v5 offset:{(k&1)*16384 + (k>>1)*1024}")
        lf = A.newlabel("L_qf"); ld = A.newlabel("L_qd")
        A(f"""s_cmp_lg_u32 s{S_W}, 0
s_cbranch_scc1 {lf}
s_cmp_lt_u32 s{sI}, 2
s_cbranch_scc1 {lf}
s_sub_u32 s36, s{sI}, 1
v_mov_b32 v4, s36
s_mov_b64 exec, 1
buffer_store_dword v4, v3, {W}, s{sFL} offen sc1
s_mov_b64 exec, -1""")
        A.label(lf)
        dma(49)
        ACC = 40
        for ks in range(16):
            if ks + 2 < 16:
                for tt in range(2):
                    A(f"ds_read_b128 {vr(8 + ((ks+2) % 4)*8 + tt*4, 4)}, v5 offset:{tt*16384 + (ks+2)*1024}")
            A(f"s_waitcnt lgkmcnt({min(4, 2*(15-ks))})")
            for tt in range(2):
                for T in range(2):
                    d = vr(ACC + (tt*2+T)*4, 4); x = vr(8 + (ks % 4)*8 + tt*4, 4); wf = ar((ks*2+T)*4, 4)
                    c = "0" if ks == 0 else d
                    A(f"v_mfma_f32_16x16x32_bf16 {d}, {wf}, {x}, {c}" if var == "kq" else f"v_mfma_f32_16x16x32_bf16 {d}, {x}, {wf}, {c}")
        for o in range(2):
            t0, t1 = ((o*2, o*2+1) if var == "kq" else (o, 2+o))
            for k, t in enumerate((t0, t1)):
                A(f"v_cvt_pk_bf16_f32 v{56+o*4+2*k}, v{ACC+t*4}, v{ACC+t*4+1}\nv_cvt_pk_bf16_f32 v{56+o*4+2*k+1}, v{ACC+t*4+2}, v{ACC+t*4+3}")
        if var == "kq":
            A(f"s_add_u32 s36, s{sOUT}, 4096\nbuffer_store_dwordx4 v[56:59], v1, {W}, s{sOUT} offen sc1\nbuffer_store_dwordx4 v[60:63], v1, {W}, s36 offen sc1")
        else:
            A(f"buffer_store_dwordx4 v[56:59], v1, {W}, s{sOUT} offen sc1\nbuffer_store_dwordx4 v[60:63], v1, {W}, s{sOUT} offen offset:1024 sc1")
        A(f"""s_add_u32 s{sOUT}, s{sOUT}, 0x80000
s_add_u32 s{sI}, s{sI}, 1
s_cmp_lt_u32 s{sI}, 32
s_cbranch_scc1 L_qkv_{var}""")
        if var == "kq": A("s_branch L_qkv_end")
    A.label("L_qkv_end")
    lf = A.newlabel("L_qf")
    A(f"""s_waitcnt vmcnt(0)
s_barrier
s_cmp_lg_u32 s{S_W}, 0
s_cbranch_scc1 {lf}
v_mov_b32 v4, 32
s_mov_b64 exec, 1
buffer_store_dword v4, v3, {W}, s{sFL} offen sc1
s_mov_b64 exec, -1""")
    A.label(lf)

def gemm_b(A, which, stile):
    one = which == 1
    nks = 16 if one else 14
    rstride = 3584 if one else 4096
    nb = 28 if one else 32
    FB = WS_H2T if one else WS_G
    srd(A, 12, P_W1 if one else P_W2, 2048*3584 if one else 1792*4096)
    srd(A, 16, P_B1 if one else P_B2, 3584 if one else 4096)
    if one: A(f"s_mul_hi_u32 s41, s{stile}, {((1 << 32) + 27)//28:#x}\ns_mul_i32 s40, s41, 28\ns_sub_u32 s40, s{stile}, s40")
    else: A(f"s_lshr_b32 s41, s{stile}, 5\ns_and_b32 s40, s{stile}, 31")
    A(f"""v_and_b32 v1, 15, v{vLN}
v_lshrrev_b32 v2, 4, v{vLN}
v_mul_u32_u24 v3, {8*rstride}, v2
v_lshl_add_u32 v3, v1, 3, v3
s_mul_i32 s36, s{S_W}, {nks*32*rstride}
s_lshl_b32 s37, s40, 7
s_add_u32 s36, s36, s37
v_add_u32 v3, s36, v3
v_lshlrev_b32 v4, 13, v2""")
    if one: A("v_lshl_add_u32 v4, v1, 4, v4")
    else: A("v_lshrrev_b32 v5, 2, v1\nv_lshl_add_u32 v4, v5, 7, v4\nv_and_b32 v5, 3, v1\nv_lshl_add_u32 v4, v5, 4, v4")
    A(f"""s_mul_i32 s36, s{S_W}, {nks*4*8192}
s_lshl_b32 s37, s41, 11
s_add_u32 s36, s36, s37
s_add_u32 s36, s36, {FB:#x}
v_add_u32 v4, s36, v4""")
    if one: A("s_lshl_b32 s36, s40, 7\nv_lshlrev_b32 v5, 5, v2\nbuffer_load_dwordx4 v[8:11], v5, s[16:19], s36 offen\nbuffer_load_dwordx4 v[12:15], v5, s[16:19], s36 offen offset:16")
    else: A("s_lshl_b32 s36, s40, 7\nv_lshlrev_b32 v5, 3, v1\nbuffer_load_dwordx2 v[8:9], v5, s[16:19], s36 offen")
    NST = 3
    RAW = 16; FR = RAW + 16*NST; PF = FR + 32*NST
    def foff(t): return t*256 if one else (t >> 1)*512 + (t & 1)*64
    def issue(ks):
        st = ks % NST
        for r in range(8):
            A(f"s_mov_b32 s36, {(32*ks + r)*rstride:#x}\nbuffer_load_dwordx2 {vr(RAW + st*16 + 2*r, 2)}, v3, s[12:15], s36 offen")
        A(f"s_mov_b32 s36, {ks*32768:#x}")
        for t in range(8):
            A(f"buffer_load_dwordx4 {vr(FR + st*32 + 4*t, 4)}, v4, {W}, s36 offen offset:{foff(t)} sc1")
    for ks in range(NST): issue(ks)
    for ks in range(nks):
        st = ks % NST
        left = min(NST - 1, nks - 1 - ks)
        A(f"s_waitcnt vmcnt({16*left + 8})")
        for j in range(4):
            for q in range(4):
                A(f"v_perm_b32 v{PF + j*4 + q}, v{RAW + st*16 + 4*q + 2 + (j >> 1)}, v{RAW + st*16 + 4*q + (j >> 1)}, s{sHI_ if j & 1 else sLO}")
        for t in range(8):
            A(f"s_waitcnt vmcnt({16*left + 7 - t})")
            for j in range(4):
                d = ar((t*4 + j)*4, 4); c = "0" if ks == 0 else d
                a_, b_ = vr(PF + j*4, 4), vr(FR + st*32 + 4*t, 4)
                A(f"v_mfma_f32_16x16x32_bf16 {d}, {a_}, {b_}, {c}" if one else f"v_mfma_f32_16x16x32_bf16 {d}, {b_}, {a_}, {c}")
        if ks + NST < nks: issue(ks + NST)
    A(f"v_lshlrev_b32 v6, 4, v{vLN}\ns_nop 7")
    for w in range(4):
        lab = A.newlabel("L_gw")
        A(f"s_cmp_lg_u32 s{S_W}, {w}\ns_cbranch_scc1 {lab}")
        for dst in range(4):
            if dst == w:
                for k in range(32): A(f"v_accvgpr_read_b32 v{16+k}, a{dst*32 + k}")
            else:
                off = (dst*3 + ((w ^ dst) - 1))*8192
                A(f"v_add_u32 v7, {off}, v6")
                for k in range(8): A(f"ds_write_b128 v7, {ar(dst*32 + 4*k, 4)} offset:{k*1024}")
        A.label(lab)
    A(f"s_mul_i32 s36, s{S_W}, {3*8192}\nv_add_u32 v7, s36, v6\ns_waitcnt lgkmcnt(0)\ns_barrier")
    for s_ in range(3):
        for k in range(8): A(f"ds_read_b128 {vr(48 + s_*32 + 4*k, 4)}, v7 offset:{s_*8192 + k*1024}")
        if s_ > 0:
            A("s_waitcnt lgkmcnt(8)")
            for k in range(32): A(f"v_add_f32 v{16+k}, v{16+k}, v{48 + (s_-1)*32 + k}")
    A("s_waitcnt lgkmcnt(0)")
    for k in range(32): A(f"v_add_f32 v{16+k}, v{16+k}, v{48 + 64 + k}")
    if one:
        for i in range(8): A(f"v_lshlrev_b32 v{48+2*i}, 16, v{8+i}\nv_and_b32 v{49+2*i}, s{sMSK}, v{8+i}")
        c1 = -2*math.sqrt(2/math.pi)*math.log2(math.e)
        A(f"s_mov_b32 s36, {f2u(c1):#x}\ns_mov_b32 s37, {f2u(c1*0.044715):#x}\nv_mov_b32 v64, s36")
        for tl in range(2):
            for j in range(4):
                for r in range(4):
                    x = 16 + tl*16 + j*4 + r
                    bf16r(A, x, x)
                    A(f"v_add_f32 v{x}, v{x}, v{48 + 4*r + j}")
                    bf16r(A, x, x)
                    A(f"""v_mul_f32 v65, v{x}, v{x}
v_fma_f32 v65, v65, s37, v64
v_mul_f32 v65, v65, v{x}
v_exp_f32 v65, v65
v_add_f32 v65, 1.0, v65
v_rcp_f32 v65, v65
v_mul_f32 v{x}, v{x}, v65""")
        A(f"""v_lshlrev_b32 v5, 14, v2
v_lshl_add_u32 v5, v1, 4, v5
s_lshl_b32 s36, s40, 16
s_lshl_b32 s37, s41, 11
s_add_u32 s36, s36, s37
s_lshl_b32 s37, s{S_W}, 9
s_add_u32 s36, s36, s37
s_add_u32 s36, s36, {WS_G:#x}
s_add_u32 s37, s36, 8192""")
        for tl in range(2):
            for hh in range(2):
                for q in range(4):
                    e0 = 8*hh + 2*q; e1 = e0 + 1
                    A(f"v_cvt_pk_bf16_f32 v{68 + (tl*2+hh)*4 + q}, v{16 + tl*16 + (e0 & 3)*4 + (e0 >> 2)}, v{16 + tl*16 + (e1 & 3)*4 + (e1 >> 2)}")
                A(f"buffer_store_dwordx4 {vr(68 + (tl*2+hh)*4, 4)}, v5, {W}, s{36+hh} offen offset:{tl*256} sc1")
    else:
        A(f"v_lshlrev_b32 v48, 16, v8\nv_and_b32 v49, s{sMSK}, v8\nv_lshlrev_b32 v50, 16, v9\nv_and_b32 v51, s{sMSK}, v9")
        A(f"""v_lshlrev_b32 v5, 12, v1
v_lshl_add_u32 v5, v2, 4, v5
s_lshl_b32 s36, s40, 16
s_lshl_b32 s37, s41, 8
s_add_u32 s36, s36, s37
s_lshl_b32 s37, s{S_W}, 6
s_add_u32 s36, s36, s37
s_add_u32 s36, s36, {WS_YB:#x}""")
        for j in range(4):
            for tl in range(2):
                for r in range(4):
                    x = 16 + tl*16 + j*4 + r
                    bf16r(A, x, x)
                    A(f"v_add_f32 v{x}, v{x}, v{48+j}")
                for q in range(2):
                    x = 16 + tl*16 + j*4 + 2*q
                    A(f"v_cvt_pk_bf16_f32 v{68 + j*4 + tl*2 + q}, v{x}, v{x+1}")
            A(f"buffer_store_dwordx4 {vr(68 + j*4, 4)}, v5, {W}, s36 offen offset:{j*1024} sc1")
    arrive(A, DBG_B1 if one else DBG_B2, 112 if one else 128)

def outproj(A):
    sP, sU, sPB = 40, 41, 42
    srd(A, 12, P_WO, 0x400000); srd(A, 16, P_X, 0x200000); srd(A, 20, P_OUT, 0x200000)
    A(f"""s_and_b32 s{sP}, s{sWI}, 15
s_lshr_b32 s{sU}, s{sWI}, 4
v_and_b32 v1, 15, v{vLN}
v_lshrrev_b32 v2, 4, v{vLN}
v_lshlrev_b32 v3, 13, v2            ; 8g rows
v_lshl_add_u32 v3, v1, 2, v3
s_lshl_b32 s36, s{S_W}, 20
s_lshl_b32 s37, s{sP}, 6
s_add_u32 s36, s36, s37
v_add_u32 v3, s36, v3""")
    jobs = []
    for kk in range(32):
        for q, (ra, rb) in enumerate(((0, 2), (4, 6), (1, 3), (5, 7))):
            base = (32*kk + (ra & 4))*1024
            jobs.append((12, base, base, (ra & 3)*1024, (rb & 3)*1024, ("a", (kk*2)*4 + q), ("a", (kk*2+1)*4 + q)))
    issue, retire, n = load_pairs(A, jobs, 3, 28, 64)
    for i in range(28): issue(i)
    for i in range(n):
        A(f"s_waitcnt vmcnt({2*min(27, n-1-i)})")
        retire(i)
        if i + 28 < n: issue(i + 28)
    tl(A, 10)
    wg_wait_dbg(A, DBG_B2, 128)
    tl(A, 11)
    A(f"""v_lshlrev_b32 v4, 4, v{vLN}
v_lshlrev_b32 v5, 2, v{vLN}
v_lshlrev_b32 v6, 10, v1
v_lshl_add_u32 v6, v2, 4, v6
s_lshl_b32 s36, s{sP}, 6
v_add_u32 v6, s36, v6               ; tok*1024 + P*64 + g*16
s_lshl_b32 s36, s{S_W}, 11
v_add_u32 v7, s36, v4
s_mov_b32 s{sPB}, 0""")
    A.label("L_op_loop")
    A(f"""s_cmp_lt_u32 s{sU}, 32
s_cselect_b32 s36, 3, 7
s_and_b32 s36, s{sU}, s36
s_lshl_b32 s36, s36, 7
s_add_u32 s44, s36, {WS_PO:#x}
s_lshr_b32 s43, s{sU}, 1
s_max_u32 s48, s43, 3
s_sub_u32 s48, s48, 3
s_lshl_b32 s45, s{sU}, 14""")
    lx = A.newlabel("L_opx")
    A(f"""s_cmp_lg_u32 s{S_W}, 0
s_cbranch_scc1 {lx}
s_add_u32 s36, s45, {WS_YB:#x}
buffer_load_dwordx4 v[8:11], v6, s[16:19], s45 offen
buffer_load_dwordx4 v[12:15], v6, {W}, s36 offen sc1""")
    A(f"s_cmp_ge_u32 s{sU}, 124\ns_cbranch_scc1 L_op_last")
    A.label("L_op_poll")
    A(f"""s_mov_b32 exec_hi, 0
buffer_load_dword v16, v5, {W}, s44 offen sc1
s_waitcnt vmcnt(0)
v_cmp_gt_u32 s[46:47], s48, v16
v_cmp_ge_u32 vcc, s43, v16
s_mov_b64 exec, -1
s_cbranch_vccz {lx}
s_cmp_eq_u64 s[46:47], 0
s_cbranch_scc1 L_op_near
s_sleep 48""")
    A.label("L_op_near")
    A("s_sleep 3")
    spin_guard(A)
    A("s_branch L_op_poll")
    A.label(lx)
    A(f"s_barrier\ns_mov_b32 s{S_TMO}, 0")
    tl(A, 13)
    A.label("L_op_load")
    A(f"""s_lshl_b32 s36, s{sU}, 17
s_lshl_b32 s37, s{S_W}, 15
s_add_u32 s36, s36, s37
s_add_u32 s36, s36, {WS_OX:#x}""")
    for kk in range(32):
        if kk and kk % 4 == 0: A("s_add_u32 s36, s36, 4096")
        A(f"buffer_load_dwordx4 {vr(64 + 4*kk, 4)}, v4, {W}, s36 offen offset:{(kk % 4)*1024} sc1")
    for kk in range(32):
        A(f"s_waitcnt vmcnt({31-kk})")
        for T in range(2):
            d = vr(24 + 4*T, 4)
            A(f"v_mfma_f32_16x16x32_bf16 {d}, {ar((kk*2+T)*4, 4)}, {vr(64 + 4*kk, 4)}, {'0' if kk == 0 else d}")
        A(f"v_max_u32 v19, v{64 + 4*kk}, {'v19' if kk else 'v64'}")
    A(f"""s_cmp_lt_u32 s{sU}, 124
s_cbranch_scc1 L_op_ok
v_cmp_eq_u32 vcc, -1, v19
s_cbranch_vccz L_op_ok""")
    spin_guard(A)
    A("s_nop 4\ns_branch L_op_load")
    A.label("L_op_ok")
    tl(A, 14)
    ly = A.newlabel("L_opy"); lz = A.newlabel("L_opz")
    A(f"""v_add_u32 v17, s{sPB}, v7
s_cmp_eq_u32 s{S_W}, 0
s_cbranch_scc1 {ly}
s_nop 4
ds_write_b128 v17, v[24:27]
ds_write_b128 v17, v[28:31] offset:1024
s_waitcnt lgkmcnt(0)
s_barrier
s_branch {lz}""")
    A.label(ly)
    A("s_barrier")
    for s_ in range(3):
        A(f"ds_read_b128 {vr(32 + 8*s_, 4)}, v17 offset:{(s_+1)*2048}\nds_read_b128 {vr(36 + 8*s_, 4)}, v17 offset:{(s_+1)*2048 + 1024}")
    for s_ in range(3):
        A(f"s_waitcnt lgkmcnt({4 - 2*s_})")
        for k in range(8): A(f"v_add_f32 v{24+k}, v{24+k}, v{32 + 8*s_ + k}")
    for r in range(4):
        for T in range(2):
            x = 24 + 4*T + r
            bf16r(A, x, x)
            A(f"v_lshlrev_b32 v18, 16, v{8+r}" if T == 0 else f"v_and_b32 v18, s{sMSK}, v{8+r}")
            A(f"v_add_f32 v{x}, v{x}, v18")
            bf16r(A, x, x)
            A(f"v_lshlrev_b32 v18, 16, v{12+r}" if T == 0 else f"v_and_b32 v18, s{sMSK}, v{12+r}")
            A(f"v_add_f32 v{x}, v{x}, v18")
        A(f"v_cvt_pk_bf16_f32 v{20+r}, v{24+r}, v{28+r}")
    A("buffer_store_dwordx4 v[20:23], v6, s[20:23], s45 offen")
    A.label(lz)
    A(f"""s_xor_b32 s{sPB}, s{sPB}, 8192
s_add_u32 s{sU}, s{sU}, 10
s_cmp_lt_u32 s{sU}, 128
s_cbranch_scc1 L_op_loop
s_waitcnt vmcnt(0)""")
    tl(A, 12)
    A("s_waitcnt vmcnt(0)\ns_endpgm")
    A.label("L_op_last")
    A(f"""v_lshlrev_b32 v18, 12, v{vLN}
s_lshl_b32 s36, s{sU}, 17
s_add_u32 s36, s36, {WS_OX + 4080:#x}""")
    A.label("L_op_lp")
    A(f"""s_mov_b32 exec_hi, 0
buffer_load_dword v16, v5, {W}, s44 offen sc1
s_waitcnt vmcnt(0)
v_cmp_gt_u32 vcc, s48, v16
s_mov_b64 exec, -1
s_cbranch_vccz L_op_ln
s_sleep 32""")
    spin_guard(A)
    A("s_branch L_op_lp")
    A.label("L_op_ln")
    A(f"""s_mov_b32 exec_hi, 0
buffer_load_dword v17, v18, {W}, s36 offen sc1
s_waitcnt vmcnt(0)
v_cmp_eq_u32 vcc, -1, v17
s_mov_b64 exec, -1
s_cbranch_vccz {lx}
s_sleep 1""")
    spin_guard(A)
    A("s_branch L_op_ln")

def attention(A, SL63=48):
    sH, sSEG, sFL, sRDY, sPM, sSC, sHM, sPO, sDONE = 40, 41, 42, 43, 44, 46, 48, 58, 35
    KV, KF, OB, PK = 64, 80, 96, 128
    A(f"""s_and_b32 s{sH}, s{sWI}, 31
s_lshr_b32 s{sSEG}, s{S_W}, 1
s_cmp_lt_u32 s{sWI}, 192
s_cselect_b32 s36, 18, 0
s_cselect_b32 s38, 512, 0
s_add_u32 s{sSEG}, s{sSEG}, s36
s_mov_b32 s{sDONE}, 0
s_lshl_b32 s36, s{sH}, 7
s_add_u32 s{sFL}, s36, {WS_FLAG:#x}
s_mov_b32 s{sRDY}, 0
s_mov_b32 s{sPM}, 0
s_mov_b32 s{sSC}, {f2u(math.log2(math.e)/math.sqrt(128.0)):#x}
s_mov_b32 s{sSC+1}, s{sSC}
s_mov_b32 s{sHM}, 0
s_mov_b32 s{sHM+1}, -1
s_lshl_b32 s36, s{S_W}, 7
s_lshl_b32 s37, s{sH}, 2
s_add_u32 s36, s36, s37
s_add_u32 s36, s36, s38
s_add_u32 s{sPO}, s36, {WS_PO:#x}
v_and_b32 v1, 15, v{vLN}
v_lshrrev_b32 v2, 4, v{vLN}
v_lshlrev_b32 v3, 4, v{vLN}
v_lshrrev_b32 v6, 1, v2
v_lshlrev_b32 v6, 8, v6
v_lshl_add_u32 v6, v1, 4, v6
v_and_b32 v7, 1, v2
v_lshl_add_u32 v6, v7, 3, v6
s_lshl_b32 s36, s{S_W}, 11
v_add_u32 v4, s36, v6
v_lshrrev_b32 v6, 2, v1
v_lshl_add_u32 v6, v2, 2, v6
v_lshlrev_b32 v6, 4, v6
v_and_b32 v7, 1, v1
v_lshl_add_u32 v6, v7, 3, v6
v_add_u32 v5, s36, v6
v_lshlrev_b32 v6, 2, v2
v_mov_b32 v8, 0
v_mov_b32 v9, {f2u(-1e9*math.sqrt(128.0)):#x}
v_mov_b32 v56, 0x3f803f80
v_mov_b32 v57, 0x3f803f80
v_mov_b32 v58, 0x3f803f80
v_mov_b32 v59, 0x3f803f80
v_mov_b32 v61, 0
v_mov_b32 v62, 0""")
    for r in range(4): A(f"v_add_u32 v7, {r}, v6\nv_cmp_le_u32 s[{50+2*r}:{51+2*r}], v7, v1")
    def wait_qkv(seg):
        lp = A.newlabel("L_atp"); lh = A.newlabel("L_ath")
        A(f"s_cmp_gt_u32 s{sRDY}, s{seg}\ns_cbranch_scc1 {lh}")
        A.label(lp)
        A(f"""buffer_load_dwordx4 v[10:13], v8, {W}, s{sFL} offen sc1
buffer_load_dwordx2 v[14:15], v8, {W}, s{sFL} offen offset:16 sc1
s_waitcnt vmcnt(0)
v_min3_u32 v10, v10, v12, v14
v_min3_u32 v11, v11, v13, v15
v_lshlrev_b32 v10, 1, v10
v_lshl_or_b32 v11, v11, 1, 1
v_min_u32 v10, v10, v11
v_readfirstlane_b32 s{sRDY}, v10
s_cmp_gt_u32 s{sRDY}, s{seg}
s_cbranch_scc1 {lh}
s_sleep 8""")
        spin_guard(A)
        A(f"s_branch {lp}")
        A.label(lh)
    def fetch(qt, st, seg):
        A(f"s_lshl_b32 s36, s{seg}, 5\ns_add_u32 s36, s36, s{sH}\ns_lshl_b32 s36, s36, 13")
        A(f"s_add_u32 s37, s36, {WS_QX + qt*4096:#x}")
        for k in range(4): A(f"buffer_load_dwordx4 {ar(128*st + 4*k, 4)}, v3, {W}, s37 offen offset:{k*1024} sc1")
        A(f"s_add_u32 s37, s36, {WS_KX:#x}\ns_add_u32 s38, s37, 4096")
        for k in range(4*(qt+1)): A(f"buffer_load_dwordx4 {ar(128*st + 16 + 4*k, 4)}, v3, {W}, s{37 + (k >> 2)} offen offset:{(k & 3)*1024} sc1")
        A(f"s_add_u32 s37, s36, {WS_VX:#x}\ns_add_u32 s38, s37, 4096")
        for k in range(8): A(f"buffer_load_dwordx4 {ar(128*st + 48 + 4*k, 4)}, v3, {W}, s{37 + (k >> 2)} offen offset:{(k & 3)*1024} sc1")
    def flag():
        A(f"""v_mov_b32 v10, s{sDONE}
s_mov_b64 exec, 1
buffer_store_dword v10, v8, {W}, s{sPO} offen sc1
s_mov_b64 exec, -1""")
    def unit(qt, st):
        Q, K, V = 128*st, 128*st + 16, 128*st + 48
        tiles = [(16, 0)] if qt == 0 else [(16, 0), (20, 1)]
        for j in range(4):
            for d, kt in tiles:
                A(f"v_mfma_f32_16x16x32_bf16 {vr(d,4)}, {ar(K + kt*16 + 4*j, 4)}, {ar(Q + 4*j, 4)}, {'0' if j == 0 else vr(d,4)}")
        if st == 1: tl(A, 8)
        lq = A.newlabel("L_atq"); lr = A.newlabel("L_atr")
        A(f"s_cmp_lt_u32 s{sSEG}, 16\ns_cselect_b32 s39, 2, 4\ns_add_u32 s39, s39, s{sSEG}\ns_cmp_gt_u32 s39, 63\ns_cbranch_scc1 {lq}")
        wait_qkv(39)
        fetch(qt, st ^ 1, 39)
        A(f"s_waitcnt vmcnt({12 + 4*(qt+1)})\ns_branch {lr}")
        A.label(lq)
        A("s_waitcnt vmcnt(0)")
        A.label(lr)
        flag()
        lp = A.newlabel("L_atm"); lh = A.newlabel("L_atn")
        A(f"s_min_u32 s59, s{sSEG}, 61\ns_cmp_gt_u32 s{sPM}, s59\ns_cbranch_scc1 {lh}")
        A.label(lp)
        A(f"""buffer_load_dword v10, v8, {W}, s{sFL} offen offset:32 sc1
s_waitcnt vmcnt(0)
v_readfirstlane_b32 s{sPM}, v10
s_cmp_gt_u32 s{sPM}, s59
s_cbranch_scc1 {lh}
s_cmp_eq_u32 s{sPM}, s59
s_cbranch_scc1 {lp}_n
s_sleep 16""")
        A.label(f"{lp}_n")
        A("s_sleep 2")
        spin_guard(A)
        A(f"s_branch {lp}")
        A.label(lh)
        if st == 1:
            ls = A.newlabel("L_ats")
            A(f"s_cmp_lg_u32 s{sSEG}, 63\ns_cbranch_scc1 {ls}\ns_sleep {SL63}")
            A.label(ls)
            tl(A, 9)
        A(f"""s_mov_b32 s{S_TMO}, 0
s_lshl_b32 s36, s{sSEG}, 5
s_add_u32 s36, s36, s{sH}
s_lshl_b32 s36, s36, 12
s_add_u32 s36, s36, {WS_KVM:#x}""")
        for k in range(4): A(f"buffer_load_dwordx4 {vr(KV + 4*k, 4)}, v3, {W}, s36 offen offset:{k*1024} sc1")
        dg = 16 + 4*qt
        for r in range(4): A(f"v_cndmask_b32 v{dg+r}, v9, v{dg+r}, s[{50+2*r}:{51+2*r}]")
        toks = list(range(16, 20 + 4*qt))
        A(f"v_max_f32 v36, v{toks[0]}, v{toks[1]}")
        for i in range(2, len(toks), 2): A(f"v_max3_f32 v36, v36, v{toks[i]}, v{toks[i+1]}")
        A("v_mov_b32 v37, v36\nv_permlane32_swap_b32 v36, v37\nv_max_f32 v36, v36, v37")
        A(f"""s_lshl_b32 s45, s{sSEG}, 6
s_add_u32 s45, s45, s{sH}
s_lshl_b32 s45, s45, 12
s_add_u32 s45, s45, {WS_OX + qt*0x20000:#x}""")
        if st == 1:
            lk = A.newlabel("L_atk"); ld_ = A.newlabel("L_atd")
            A(f"s_cmp_lt_u32 s{sSEG}, 62\ns_cbranch_scc1 {ld_}")
            A.label(lk)
            A(f"""s_waitcnt vmcnt(0)
v_max3_u32 v10, v{KV}, v{KV+4}, v{KV+8}
v_max_u32 v10, v10, v{KV+12}
v_cmp_eq_u32 vcc, -1, v10
s_cbranch_vccz {ld_}
s_sleep 1""")
            spin_guard(A)
            for k in range(4): A(f"buffer_load_dwordx4 {vr(KV + 4*k, 4)}, v3, {W}, s36 offen offset:{k*1024} sc1")
            A(f"s_branch {lk}")
            A.label(ld_)
            tl(A, 10)
        for k in range(4):
            A(f"s_waitcnt vmcnt({3-k})\nds_write_b64 v4, {vr(KV + 4*k, 2)} offset:{k*512}")
        A("s_waitcnt lgkmcnt(0)")
        for j in range(4):
            A(f"ds_read_b64_tr_b16 {vr(KF + 4*j, 2)}, v5 offset:{j*512}\nds_read_b64_tr_b16 {vr(KF + 4*j + 2, 2)}, v5 offset:{j*512 + 256}")
        for j in range(4):
            A(f"s_waitcnt lgkmcnt({6 - 2*j})")
            A(f"v_mfma_f32_16x16x32_bf16 v[28:31], {vr(KF + 4*j, 4)}, {ar(Q + 4*j, 4)}, {'0' if j == 0 else 'v[28:31]'}")
        A("v_max3_f32 v36, v36, v28, v29\nv_max3_f32 v36, v36, v30, v31\nv_mov_b32 v37, v36")
        A(f"v_cndmask_b32 v28, v28, v30, s[{sHM}:{sHM+1}]\nv_cndmask_b32 v29, v29, v31, s[{sHM}:{sHM+1}]")
        A(f"v_permlane16_swap_b32 v36, v37\nv_max_f32 v36, v36, v37\nv_mul_f32 v36, s{sSC}, v36")
        for b in toks[::2] + [28]:
            A(f"v_pk_fma_f32 {vr(b,2)}, {vr(b,2)}, s[{sSC}:{sSC+1}], v[36:37] op_sel_hi:[1,1,0] neg_lo:[0,0,1] neg_hi:[0,0,1]")
        for b in toks + [28, 29]: A(f"v_exp_f32 v{b}, v{b}")
        for i in range(4):
            if 2*i < len(toks): A(f"v_cvt_pk_bf16_f32 v{40+i}, v{toks[2*i]}, v{toks[2*i+1]}")
            else: A(f"v_mov_b32 v{40+i}, 0")
        A("v_cvt_pk_bf16_f32 v60, v28, v29\nv_cvt_pk_bf16_f32 v63, v28, v29")
        A("v_mfma_f32_16x16x32_bf16 v[44:47], v[56:59], v[40:43], 0")
        for et in range(8):
            A(f"v_mfma_f32_16x16x32_bf16 {vr(OB + 4*et, 4)}, {ar(V + 4*et, 4)}, v[40:43], 0")
        A("v_mfma_f32_16x16x16_bf16 v[44:47], v[56:57], v[60:61], v[44:47]")
        for et in range(8):
            A(f"v_mfma_f32_16x16x16_bf16 {vr(OB + 4*et, 4)}, {vr(KV + 4*(et >> 1) + 2, 2)}, {vr(60 + 2*(et & 1), 2)}, {vr(OB + 4*et, 4)}")
        A("v_rcp_f32 v44, v44")
        for j in range(4):
            for i in range(0, 8, 2): A(f"v_pk_mul_f32 {vr(OB + 8*j + i, 2)}, {vr(OB + 8*j + i, 2)}, v[44:45] op_sel_hi:[1,0]")
            for i in range(4): A(f"v_cvt_pk_bf16_f32 v{PK + 4*j + i}, v{OB + 8*j + 2*i}, v{OB + 8*j + 2*i + 1}")
            A(f"v_min_u32 v{PK + 4*j}, -2, v{PK + 4*j}")
            A(f"buffer_store_dwordx4 {vr(PK + 4*j, 4)}, v3, {W}, s45 offen offset:{j*1024} sc1")
        if st == 1: tl(A, 11)
        A(f"s_add_u32 s{sDONE}, s{sSEG}, 1\ns_mov_b32 s{sSEG}, s39")
    A(f"s_bitcmp1_b32 s{S_W}, 0\ns_cbranch_scc1 L_at_1_pre")
    for qt in range(2):
        A.label(f"L_at_{qt}_pre")
        wait_qkv(sSEG)
        fetch(qt, 0, sSEG)
        A("s_waitcnt vmcnt(0)")
        A.label(f"L_at_{qt}")
        unit(qt, 0)
        unit(qt, 1)
        A(f"s_cmp_lt_u32 s{sSEG}, 64\ns_cbranch_scc1 L_at_{qt}\ns_waitcnt vmcnt(0)")
        flag()
        tl(A, 12)
        A("s_waitcnt vmcnt(0)\ns_endpgm")

def emit(A):
    A.label("L_worker")
    setup(A)
    A(f"s_cmp_ge_u32 s{sWI}, 192\ns_cbranch_scc1 L_att_wg")
    fin = qkv_weights_issue(A)
    ln_task(A)
    tl(A, 2)
    fin(4 + (1 if TL[0] else 0), lambda: arrive(A, DBG_LN, 224, wait=False, part=1))
    arrive(A, DBG_LN, 224, part=2)
    tl(A, 3)
    wg_wait_dbg(A, DBG_CI, 32)
    tl(A, 4)
    qkv(A)
    tl(A, 5)
    A(f"s_barrier\ns_cmp_ge_u32 s{sWI}, 160\ns_cbranch_scc1 L_att\ns_cmp_ge_u32 s{sWI}, 112\ns_cbranch_scc1 L_no_b1\ns_mov_b32 s39, s{sWI}")
    tl(A, 6)
    gemm_b(A, 1, 39)
    tl(A, 7)
    A.label("L_no_b1")
    A(f"s_cmp_lt_u32 s{sWI}, 32\ns_cbranch_scc1 L_no_b2\ns_sub_u32 s39, s{sWI}, 32")
    wg_wait_dbg(A, DBG_B1, 112)
    tl(A, 8)
    gemm_b(A, 2, 39)
    tl(A, 9)
    A.label("L_no_b2")
    outproj(A)
    A.label("L_att_wg")
    ln_task(A)
    arrive(A, DBG_LN, 224)
    wg_wait_dbg(A, DBG_CI, 32)
    A.label("L_att")
    attention(A)
```
